```python
import torch

def _softmax(x, axis=-1):
    return torch.softmax(x, dim=axis)
def _gelu(x):
    return torch.nn.functional.gelu(x, approximate="tanh")
def _silu(x):
    return torch.nn.functional.silu(x)
def _sigmoid(x):
    return torch.sigmoid(x)
def _layernorm(x, axis=-1, eps=1e-5):
    m = x.mean(dim=axis, keepdim=True)
    v = x.var(dim=axis, keepdim=True, unbiased=False)
    return (x - m) / torch.sqrt(v + eps)
def _scatter_add(tgt, idx, src, axis=0):
    return tgt.clone().index_add_(axis, idx, src)
def _segment_sum(src, seg, n):
    out = torch.zeros((n,) + src.shape[1:], dtype=src.dtype)
    return out.index_add_(0, seg, src)
def _pad(x, pw):
    flat = tuple(v for pair in reversed(pw) for v in pair)
    return torch.nn.functional.pad(x, flat)

kernel_name = 'recurrent_scan__gqa_block_cached__mixer_channel_mlp__decode'

def setup_inputs():

    _w = (lambda a: (lambda t: t.to(torch.bfloat16) if t.is_floating_point() else t)(torch.as_tensor(a)))
    def _A_setup():
        B, Sq, D = 1, 1, 640
        Hq, Hkv, Sk, Dh = 32, 32, 8192, 192
        assert Hq % Hkv == 0, (Hq, Hkv)
        return {
            "x": _w((lambda *s: torch.randn(*s, dtype=torch.bfloat16) * 0.05)(B, Sq, D)),
            "k_cache": _w((lambda *s: torch.randn(*s, dtype=torch.bfloat16) * 1.6)(B, Hkv, Sk, Dh)),
            "v_cache": _w((lambda *s: torch.randn(*s, dtype=torch.bfloat16) * 1.6)(B, Hkv, Sk, Dh)),
            "wq": _w((lambda *s: torch.randn(*s, dtype=torch.bfloat16) * 1.6)(D, Hq * Dh) * (D ** -0.5)),
            "wo": _w((lambda *s: torch.randn(*s, dtype=torch.bfloat16) * 1.6)(Hq * Dh, D) * ((Hq * Dh) ** -0.5)),
        }
    _A_in = _A_setup()

    def _B_setup():
        B, S, D, F = 1, 1, 640, 1536
        return {
            "x": _w((lambda *s: torch.randn(*s, dtype=torch.bfloat16) * 0.05)(B, S, D)),
            "w1": _w((lambda *s: torch.randn(*s, dtype=torch.bfloat16) * 0.8)(D, F) * (D ** -0.5)),
            "b1": _w((lambda *s: torch.randn(*s, dtype=torch.bfloat16) * 0.4)(F)),
            "w2": _w((lambda *s: torch.randn(*s, dtype=torch.bfloat16) * 0.4)(F, D) * (F ** -0.5)),
            "b2": _w((lambda *s: torch.randn(*s, dtype=torch.bfloat16) * 0.2)(D)),
        }
    _B_in = _B_setup()

    return {
        "A_x": _A_in["x"],
        "A_k_cache": _A_in["k_cache"],
        "A_v_cache": _A_in["v_cache"],
        "A_wq": _A_in["wq"],
        "A_wo": _A_in["wo"],
        "B_x": _B_in["x"],
        "B_w1": _B_in["w1"],
        "B_b1": _B_in["b1"],
        "B_w2": _B_in["w2"],
        "B_b2": _B_in["b2"],
    }

def reference(A_x, A_k_cache, A_v_cache, A_wq, A_wo, B_x, B_w1, B_b1, B_w2, B_b2):
    def _A_ref(x, k_cache, v_cache, wq, wo):
        B, Sq, D = x.shape
        Hq, Dh = 32, 192
        Hkv = k_cache.shape[1]
        rep = Hq // Hkv
        q = (lambda x, *d: x.permute(*d))((x @ wq).reshape(B, Sq, Hq, Dh), 0, 2, 1, 3)
        k = (lambda x, n, axis: torch.repeat_interleave(x, n, dim=axis))(k_cache, rep, axis=1)
        v = (lambda x, n, axis: torch.repeat_interleave(x, n, dim=axis))(v_cache, rep, axis=1)
        scores = torch.einsum("bhqd,bhkd->bhqk", q, k) * (Dh ** -0.5)
        p = _softmax(scores, axis=-1)
        o = torch.einsum("bhqk,bhkd->bhqd", p, v)
        return (lambda x, *d: x.permute(*d))(o, 0, 2, 1, 3).reshape(B, Sq, Hq * Dh) @ wo

    def _B_ref(x, w1, b1, w2, b2):
        y = _layernorm(x, axis=-1)
        h = _gelu(torch.einsum("bsd,df->bsf", y, w1) + b1)
        return torch.einsum("bsf,fd->bsd", h, w2) + b2

    x = A_x
    xn = _layernorm(x, axis=-1)
    s = _A_ref(xn, A_k_cache, A_v_cache, A_wq, A_wo)
    g = _silu(_B_ref(xn, B_w1, B_b1, B_w2, B_b2))
    return x + s * g
```

```python
import struct, sys, math

NAME = "recurrent_scan__gqa_block_cached__mixer_channel_mlp__decode"
OUT = sys.argv[1] if len(sys.argv) > 1 else f"cdna_kernels/{NAME}.s"
NT = (len(sys.argv) > 2 and sys.argv[2] == "nt")

def f32(x):
    return "0x%08x" % struct.unpack("<I", struct.pack("<f", x))[0]

LOG2E = f32(1.4426950408889634)
SCALE = f32(192 ** -0.5)
INV640 = f32(1.0 / 640.0)
EPS = f32(1e-5)

XN_OFF = 0
Y_OFF = 2560
QPART_OFF = 5120
HPART_OFF = 17408
QBF_OFF = 17664
H_OFF = 18048
ML_OFF = 18080
OFIN_OFF = 18144
RED_OFF = 18240
S2_OFF = 18432
LDS_BYTES = S2_OFF + 2 * 6 * 2560
WS_PART = 0
WS_S = 0x40000
WS_M = 0x100000

class G:
    def __init__(s):
        s.L = []
        s.vm = []
    def e(s, t):
        s.L.append("    " + t)
    def c(s, t):
        s.L.append("    ; " + t)
    def lab(s, t):
        s.L.append(t + ":")
    def vmem(s, t, tag):
        s.e(t)
        s.vm.append(tag)
    def wait_tag(s, tag):
        idx = max(i for i, t in enumerate(s.vm) if t == tag)
        n = min(len(s.vm) - 1 - idx, 63)
        s.e(f"s_waitcnt vmcnt({n})")
    def nop(s, n):
        while n > 0:
            k = min(n, 16)
            s.e(f"s_nop {k-1}")
            n -= k

g = G()
e = g.e

def rnd(dst, src):
    e(f"v_cvt_pk_bf16_f32 v{dst}, v{src}, v{src}")
    e(f"v_and_b32 v{dst}, 0xffff0000, v{dst}")

def dpp_reduce(op, regs):
    steps = ["row_shr:1 row_mask:0xf bank_mask:0xf", "row_shr:2 row_mask:0xf bank_mask:0xf",
             "row_shr:4 row_mask:0xf bank_mask:0xf", "row_shr:8 row_mask:0xf bank_mask:0xf",
             "row_bcast:15 row_mask:0xa bank_mask:0xf", "row_bcast:31 row_mask:0xc bank_mask:0xf"]
    for st in steps:
        if len(regs) < 3:
            g.nop(2)
        for r in regs:
            e(f"{op}_dpp v{r}, v{r}, v{r} {st}")

def reduce_to_sgpr(op, r, sd):
    dpp_reduce(op, [r])
    g.nop(1)
    e(f"v_readlane_b32 s{sd}, v{r}, 63")
    g.nop(2)

def set_exec(lo, hi):
    e(f"s_mov_b32 exec_lo, {lo}")
    e(f"s_mov_b32 exec_hi, {hi}")

def full_exec():
    e("s_mov_b64 exec, -1")

ntf = " nt" if NT else ""

e("s_cmp_ge_u32 s2, 256")
e("s_cbranch_scc1 L_end")
e("s_load_dwordx16 s[4:19], s[0:1], 0")
e("s_load_dwordx8 s[20:27], s[0:1], 64")
e("s_load_dwordx2 s[28:29], s[0:1], 96")
e("v_and_b32 v1, 63, v0")
e("v_lshrrev_b32 v5, 6, v0")
g.nop(1)
e("v_readfirstlane_b32 s70, v5")
e("s_and_b32 s68, s2, 7")
e("s_lshl_b32 s68, s68, 2")
e("s_lshr_b32 s69, s2, 3")
e("s_and_b32 s69, s69, 3")
e("s_add_u32 s68, s68, s69")
e("s_lshr_b32 s69, s2, 5")
e("s_mov_b32 s80, 0xffff0000")
e("s_mov_b32 s81, 0")
e("s_mov_b32 s82, 0")
e("s_mov_b32 s83, 0x0000ffff")
e("s_mov_b32 s84, 0")
e("s_mov_b32 s85, 0xffff0000")
e("v_and_b32 v6, 15, v1")
e("v_mul_u32_u24 v2, 384, v6")
e("v_lshrrev_b32 v6, 4, v1")
e("v_lshlrev_b32 v6, 4, v6")
e("v_add_u32 v2, v2, v6")
e("v_lshrrev_b32 v7, 5, v1")
e("v_and_b32 v8, 31, v1")
e("v_mul_u32_u24 v3, 384, v7")
e("v_mul_u32_u24 v6, 12, v8")
e("v_add_u32 v3, v3, v6")
e("s_waitcnt lgkmcnt(0)")
def srd(base, ptr, nbytes):
    e(f"s_mov_b32 s{base}, s{ptr}")
    e(f"s_and_b32 s{base+1}, s{ptr+1}, 0xffff")
    e(f"s_mov_b32 s{base+2}, {nbytes}")
    e(f"s_mov_b32 s{base+3}, 0x00020000")
srd(56, 4, 1280)
srd(32, 6, 100663296)
srd(36, 8, 100663296)
srd(40, 10, 7864320)
srd(44, 12, 7864320)
srd(48, 16, 1966080)
srd(60, 18, 3072)
srd(52, 20, 1966080)
srd(64, 22, 1280)

e("v_lshlrev_b32 v5, 2, v1")
for r in range(5):
    g.vmem(f"buffer_load_dword v{47+r}, v5, s[56:59], 0 offen offset:{256*r}", "x")
e("s_mul_i32 s71, s70, 80")
e("v_lshlrev_b32 v6, 1, v1")
e("v_add_u32 v6, s71, v6")
e("v_mul_u32_u24 v6, 3072, v6")
e("s_mul_i32 s72, s2, 12")
e("v_add_u32 v6, s72, v6")
g.vmem("buffer_load_dwordx3 v[40:42], v6, s[48:51], 0 offen", "w1")
g.vmem("buffer_load_dwordx3 v[44:46], v6, s[48:51], 0 offen offset:3072", "w1")
e("v_add_u32 v4, s71, v7")
e("v_mov_b32 v9, 12288")
e("v_mul_lo_u32 v4, v4, v9")
e("v_mul_u32_u24 v6, 12, v8")
e("v_add_u32 v4, v4, v6")
e("s_mul_i32 s72, s68, 384")
e("v_add_u32 v4, s72, v4")
def wq_reg(i):
    if i < 24: return 160 + 4 * i
    if i < 30: return 16 + 4 * (i - 24)
    return 112 + 4 * (i - 30)
e("s_mov_b32 s72, 0")
for i in range(40):
    r = wq_reg(i)
    g.vmem(f"buffer_load_dwordx3 v[{r}:{r+2}], v4, s[40:43], s72 offen", f"wq{i//8}")
    if i != 39:
        e("s_add_u32 s72, s72, 24576")
e("s_mul_i32 s73, s68, 3145728")
e("s_mul_i32 s74, s69, 393216")
e("s_add_u32 s73, s73, s74")
e("s_mul_i32 s74, s70, 49152")
e("s_add_u32 s73, s73, s74")
def k_loads(tile, blocks=(0, 1, 2, 3)):
    for b in blocks:
        e(f"s_add_u32 s72, s73, {tile*24576 + b*6144}")
        for j in range(6):
            r = 64 + 4 * (6 * b + j)
            g.vmem(f"buffer_load_dwordx4 v[{r}:{r+3}], v2, s[32:35], s72 offen offset:{64*j}{ntf}", f"K{tile}_{b}")
def v_group(grp):
    for k in range(8):
        if k % 4 == 0:
            e(f"s_add_u32 s72, s73, {(8*grp+k)*768}")
        r = 160 + 32 * (grp % 3) + 4 * k
        g.vmem(f"buffer_load_dwordx3 v[{r}:{r+2}], v3, s[36:39], s72 offen offset:{768*(k%4)}{ntf}", f"V{grp}")
k_loads(0, (0, 1))

g.wait_tag("x")
for r in range(5):
    e(f"v_lshlrev_b32 v{52+2*r}, 16, v{47+r}")
    e(f"v_and_b32 v{53+2*r}, 0xffff0000, v{47+r}")
def layernorm(lds_off):
    e("v_add_f32 v43, v52, v53")
    for k in range(54, 62):
        e(f"v_add_f32 v43, v43, v{k}")
    reduce_to_sgpr("v_add_f32", 43, 74)
    e(f"v_mov_b32 v62, {INV640}")
    e("v_mul_f32 v62, s74, v62")
    e("v_sub_f32 v63, v52, v62")
    e("v_mul_f32 v43, v63, v63")
    for k in range(53, 62):
        e(f"v_sub_f32 v63, v{k}, v62")
        e("v_fma_f32 v43, v63, v63, v43")
    reduce_to_sgpr("v_add_f32", 43, 75)
    e(f"v_mov_b32 v63, {INV640}")
    e("v_mul_f32 v63, s75, v63")
    rnd(62, 62)
    rnd(63, 63)
    e(f"v_add_f32 v63, {EPS}, v63")
    rnd(63, 63)
    e("v_sqrt_f32 v63, v63")
    g.nop(1)
    rnd(63, 63)
    e("v_rcp_f32 v63, v63")
    g.nop(1)
    for k in range(52, 62):
        e(f"v_sub_f32 v{k}, v{k}, v62")
        rnd(k, k)
        e(f"v_mul_f32 v{k}, v{k}, v63")
        rnd(k, k)
    e("v_lshlrev_b32 v5, 3, v1")
    for r in range(5):
        e(f"ds_write_b64 v5, v[{52+2*r}:{53+2*r}] offset:{lds_off + 512*r}")
layernorm(XN_OFF)
layernorm(Y_OFF)
e("s_waitcnt lgkmcnt(0)")

for k in range(10, 16):
    e(f"v_mov_b32 v{k}, 0")
e("v_lshlrev_b32 v5, 1, v1")
e("v_add_u32 v5, s71, v5")
e("v_lshlrev_b32 v5, 2, v5")
set_exec("-1", "0xff")
e(f"ds_read_b64 v[6:7], v5 offset:{Y_OFF}")
g.wait_tag("w1")
e("s_waitcnt lgkmcnt(0)")
e("v_lshrrev_b32 v8, 16, v6")
e("v_lshrrev_b32 v9, 16, v7")
for d in range(3):
    e(f"v_dot2_f32_bf16 v{10+2*d}, v{40+d}, v8, v{10+2*d}")
    e(f"v_dot2_f32_bf16 v{11+2*d}, v{40+d}, v6, v{11+2*d}")
for d in range(3):
    e(f"v_dot2_f32_bf16 v{10+2*d}, v{44+d}, v9, v{10+2*d}")
    e(f"v_dot2_f32_bf16 v{11+2*d}, v{44+d}, v7, v{11+2*d}")
full_exec()
g.nop(4)
dpp_reduce("v_add_f32", list(range(10, 16)))
e("s_lshl_b32 s72, s70, 5")
e("v_mov_b32 v5, s72")
set_exec("0", "0x80000000")
e(f"ds_write_b64 v5, v[10:11] offset:{HPART_OFF}")
e(f"ds_write_b64 v5, v[12:13] offset:{HPART_OFF+8}")
e(f"ds_write_b64 v5, v[14:15] offset:{HPART_OFF+16}")
full_exec()

for k in range(56, 62):
    e(f"v_mov_b32 v{k}, 0")
e("v_lshrrev_b32 v5, 5, v1")
e("v_add_u32 v5, s71, v5")
e("v_lshlrev_b32 v5, 2, v5")
for i in range(40):
    e(f"ds_read_b32 v{wq_reg(i)+3}, v5 offset:{XN_OFF + 8*i}")
e("s_waitcnt lgkmcnt(0)")
for grp in range(5):
    g.wait_tag(f"wq{grp}")
    for k in range(8):
        i = 8 * grp + k
        r = wq_reg(i)
        e(f"v_lshrrev_b32 v14, 16, v{r+3}")
        for d in range(3):
            e(f"v_dot2_f32_bf16 v{56+2*d}, v{r+d}, v14, v{56+2*d}")
            e(f"v_dot2_f32_bf16 v{57+2*d}, v{r+d}, v{r+3}, v{57+2*d}")
e("v_lshrrev_b32 v6, 5, v1")
e("s_lshl_b32 s72, s70, 1")
e("v_add_u32 v6, s72, v6")
e("v_mul_u32_u24 v6, 768, v6")
e("v_and_b32 v7, 31, v1")
e("v_mul_u32_u24 v7, 24, v7")
e("v_add_u32 v13, v6, v7")
g.nop(3)
e(f"ds_write_b64 v13, v[56:57] offset:{QPART_OFF}")
e(f"ds_write_b64 v13, v[58:59] offset:{QPART_OFF+8}")
e(f"ds_write_b64 v13, v[60:61] offset:{QPART_OFF+16}")
e("s_mul_i32 s72, s2, 6")
e("v_add_u32 v6, s72, v1")
e("v_lshlrev_b32 v6, 1, v6")
k_loads(0, (2, 3))
g.vmem("buffer_load_ushort v15, v6, s[60:63], 0 offen", "b1")
v_group(0)
v_group(1)
v_group(2)
e("s_waitcnt lgkmcnt(0)")
e("s_barrier")
e("s_cmp_ge_u32 s70, 3")
e("s_cbranch_scc1 L_qred_h")
e("v_lshlrev_b32 v5, 2, v0")
for k in range(16):
    e(f"ds_read_b32 v{40+k}, v5 offset:{QPART_OFF + 768*k}")
e("s_waitcnt lgkmcnt(0)")
for st in (8, 4, 2, 1):
    for k in range(st):
        e(f"v_add_f32 v{40+k}, v{40+k}, v{40+k+st}")
e("v_cvt_pk_bf16_f32 v40, v40, v40")
e("v_lshlrev_b32 v5, 1, v0")
e(f"ds_write_b16 v5, v40 offset:{QBF_OFF}")
e("s_branch L_qred_done")
g.lab("L_qred_h")
e("s_cmp_lg_u32 s70, 3")
e("s_cbranch_scc1 L_qred_done")
set_exec("0x3f", "0")
e("v_lshlrev_b32 v5, 2, v1")
for k in range(8):
    e(f"ds_read_b32 v{40+k}, v5 offset:{HPART_OFF + 32*k}")
g.wait_tag("b1")
e("s_waitcnt lgkmcnt(0)")
for st in (4, 2, 1):
    for k in range(st):
        e(f"v_add_f32 v{40+k}, v{40+k}, v{40+k+st}")
rnd(40, 40)
e("v_lshlrev_b32 v41, 16, v15")
e("v_add_f32 v40, v40, v41")
rnd(40, 40)
e("v_mul_f32 v41, v40, v40")
e(f"v_mov_b32 v42, {f32(0.044715)}")
e("v_fma_f32 v41, v41, v42, 1.0")
e("v_mul_f32 v41, v41, v40")
e(f"v_mul_f32 v41, {f32(2.0 * math.sqrt(2.0 / math.pi) * 1.4426950408889634)}, v41")
e("v_exp_f32 v41, v41")
g.nop(1)
e("v_add_f32 v41, 1.0, v41")
e("v_rcp_f32 v41, v41")
g.nop(1)
e("v_fma_f32 v40, -v40, v41, v40")
rnd(40, 40)
e(f"ds_write_b32 v5, v40 offset:{H_OFF}")
full_exec()
g.lab("L_qred_done")
e("s_waitcnt lgkmcnt(0)")
e("s_barrier")
e("v_lshrrev_b32 v5, 4, v1")
e("v_lshlrev_b32 v5, 4, v5")
for j in range(6):
    e(f"ds_read_b128 v[{16+4*j}:{19+4*j}], v5 offset:{QBF_OFF + 64*j}")
e("v_lshrrev_b32 v5, 5, v1")
e("v_lshlrev_b32 v5, 2, v5")
for k in range(56, 62):
    e(f"v_mov_b32 v{k}, 0")
e("s_waitcnt lgkmcnt(0)")

def qk(tile):
    for b in range(4):
        g.wait_tag(f"K{tile}_{b}")
        for j in range(6):
            r = 64 + 4 * (6 * b + j)
            c = "0" if j == 0 else f"v[{40+4*b}:{43+4*b}]"
            e(f"v_mfma_f32_16x16x32_bf16 v[{40+4*b}:{43+4*b}], v[{16+4*j}:{19+4*j}], v[{r}:{r+3}], {c}")
    g.nop(10)
    e("v_cndmask_b32 v62, v40, v44, s[80:81]")
    e("v_cndmask_b32 v62, v62, v48, s[82:83]")
    e("v_cndmask_b32 v62, v62, v52, s[84:85]")
    rnd(62, 62)
    e(f"v_mul_f32 v62, {SCALE}, v62")
    rnd(62, 62)
    e("v_mov_b32 v63, v62")
    reduce_to_sgpr("v_max_f32", 63, 76)
def softmax(tile):
    if tile == 0:
        e("s_mov_b32 s77, s76")
        e("v_subrev_f32 v62, s77, v62")
        e(f"v_mul_f32 v62, {LOG2E}, v62")
        e("v_exp_f32 v62, v62")
        g.nop(1)
        e("v_mov_b32 v12, v62")
    else:
        e("v_mov_b32 v6, s76")
        e("v_max_f32 v6, s77, v6")
        g.nop(1)
        e("v_readfirstlane_b32 s78, v6")
        e("v_sub_f32 v6, s77, v6")
        e(f"v_mul_f32 v6, {LOG2E}, v6")
        e("v_exp_f32 v6, v6")
        e("s_mov_b32 s77, s78")
        g.nop(2)
        e("v_subrev_f32 v62, s77, v62")
        e(f"v_mul_f32 v62, {LOG2E}, v62")
        e("v_exp_f32 v62, v62")
        for k in range(56, 62):
            e(f"v_mul_f32 v{k}, v{k}, v6")
        e("v_fma_f32 v12, v12, v6, v62")
    rnd(62, 62)
def pv(grp):
    base = 160 + 32 * (grp % 3)
    for k in range(8):
        e(f"ds_bpermute_b32 v{base+4*k+3}, v5, v62 offset:{8*(8*(grp%4)+k)}")
    g.wait_tag(f"V{grp}")
    e("s_waitcnt lgkmcnt(0)")
    for k in range(8):
        r = base + 4 * k
        e(f"v_lshrrev_b32 v14, 16, v{r+3}")
        for d in range(3):
            e(f"v_dot2_f32_bf16 v{56+2*d}, v{r+d}, v14, v{56+2*d}")
            e(f"v_dot2_f32_bf16 v{57+2*d}, v{r+d}, v{r+3}, v{57+2*d}")
    if grp + 3 < 8:
        v_group(grp + 3)

qk(0)
k_loads(1)
softmax(0)
for gg in range(4):
    pv(gg)
qk(1)
e("v_mov_b32 v7, 52429")
e("v_mul_u32_u24 v7, v0, v7")
e("v_lshrrev_b32 v7, 22, v7")
e("v_mul_u32_u24 v8, 80, v7")
e("v_sub_u32 v8, v0, v8")
e("v_lshlrev_b32 v9, 2, v7")
e("s_mul_i32 s72, s68, 192")
e("s_mul_i32 s74, s69, 24")
e("s_add_u32 s72, s72, s74")
e("v_add_u32 v9, s72, v9")
e("v_mul_u32_u24 v9, 1280, v9")
e("v_lshlrev_b32 v10, 4, v8")
e("v_add_u32 v9, v9, v10")
for i in range(4):
    g.vmem(f"buffer_load_dwordx4 v[{144+4*i}:{147+4*i}], v9, s[44:47], 0 offen offset:{1280*i}", "wo")
e("s_mul_i32 s72, s2, 6")
e("v_add_u32 v9, s72, v7")
e("v_mul_u32_u24 v9, 1280, v9")
e("v_add_u32 v9, v9, v10")
g.vmem("buffer_load_dwordx4 v[140:143], v9, s[52:55], 0 offen", "w2")
e("v_mov_b32 v138, v7")
e("v_mov_b32 v139, v8")
softmax(1)
for gg in range(4, 8):
    pv(gg)

reduce_to_sgpr("v_add_f32", 12, 79)
e(f"ds_write_b64 v13, v[56:57] offset:{QPART_OFF}")
e(f"ds_write_b64 v13, v[58:59] offset:{QPART_OFF+8}")
e(f"ds_write_b64 v13, v[60:61] offset:{QPART_OFF+16}")
e("v_mov_b32 v6, s77")
e("v_mov_b32 v7, s79")
e("s_lshl_b32 s72, s70, 3")
e("v_mov_b32 v5, s72")
set_exec("1", "0")
e(f"ds_write_b64 v5, v[6:7] offset:{ML_OFF}")
full_exec()
e("s_waitcnt lgkmcnt(0)")
e("s_barrier")
e("s_cmp_ge_u32 s70, 3")
e("s_cbranch_scc1 L_comb_done")
e("v_mov_b32 v5, 0")
for w in range(8):
    e(f"ds_read_b64 v[{40+2*w}:{41+2*w}], v5 offset:{ML_OFF + 8*w}")
e("v_lshlrev_b32 v5, 2, v0")
for k in range(16):
    e(f"ds_read_b32 v{64+k}, v5 offset:{QPART_OFF + 768*k}")
e("s_waitcnt lgkmcnt(0)")
e("v_max_f32 v6, v40, v42")
for w in range(2, 8):
    e(f"v_max_f32 v6, v6, v{40+2*w}")
for w in range(8):
    e(f"v_sub_f32 v{40+2*w}, v{40+2*w}, v6")
    e(f"v_mul_f32 v{40+2*w}, {LOG2E}, v{40+2*w}")
    e(f"v_exp_f32 v{40+2*w}, v{40+2*w}")
g.nop(1)
e("v_mul_f32 v7, v40, v41")
for w in range(1, 8):
    e(f"v_fma_f32 v7, v{40+2*w}, v{41+2*w}, v7")
for w in range(8):
    e(f"v_add_f32 v{64+2*w}, v{64+2*w}, v{65+2*w}")
e("v_mul_f32 v8, v40, v64")
for w in range(1, 8):
    e(f"v_fma_f32 v8, v{40+2*w}, v{64+2*w}, v8")
e("s_lshl_b32 s72, s68, 3")
e("s_add_u32 s72, s72, s69")
e("s_lshl_b32 s72, s72, 10")
e("v_add_u32 v9, s72, v5")
e(f"global_store_dword v9, v8, s[28:29] offset:{WS_PART} sc1")
e("s_cmp_lg_u32 s70, 0")
e("s_cbranch_scc1 L_comb_done")
set_exec("1", "0")
e(f"global_store_dwordx2 v9, v[6:7], s[28:29] offset:{WS_PART+768} sc1")
full_exec()
g.lab("L_comb_done")
e("s_waitcnt vmcnt(0)")
e("s_barrier")
e("s_cmp_lg_u32 s70, 0")
e("s_cbranch_scc1 L_sync1_done")
set_exec("1", "0")
e("s_lshl_b32 s72, s68, 2")
e("v_mov_b32 v5, s72")
e("v_mov_b32 v6, 1")
e("global_atomic_add v5, v6, s[26:27] sc1")
e("s_mov_b32 s74, 0")
g.lab("L_poll1")
e("global_load_dword v6, v5, s[26:27] sc1")
e("s_waitcnt vmcnt(0)")
e("v_readfirstlane_b32 s75, v6")
e("s_add_u32 s74, s74, 1")
g.nop(2)
e("s_cmp_ge_u32 s75, 8")
e("s_cbranch_scc1 L_poll1_done")
e("s_cmp_ge_u32 s74, 0x40000")
e("s_cbranch_scc1 L_poll1_done")
e("s_sleep 1")
e("s_branch L_poll1")
g.lab("L_poll1_done")
full_exec()
e("s_lshl_b32 s72, s68, 13")
e("s_mul_i32 s74, s69, 96")
e("s_add_u32 s74, s74, s72")
e("v_lshlrev_b32 v5, 2, v1")
e("v_add_u32 v5, s74, v5")
e("v_mov_b32 v6, s72")
set_exec("0xffffff", "0")
for cc in range(8):
    e(f"v_add_u32 v7, {1024*cc}, v5")
    e(f"global_load_dword v{64+cc}, v7, s[28:29] offset:{WS_PART} sc1")
    e(f"v_add_u32 v8, {1024*cc}, v6")
    e(f"global_load_dwordx2 v[{40+2*cc}:{41+2*cc}], v8, s[28:29] offset:{WS_PART+768} sc1")
e("s_waitcnt vmcnt(0)")
e("v_max_f32 v6, v40, v42")
for w in range(2, 8):
    e(f"v_max_f32 v6, v6, v{40+2*w}")
for w in range(8):
    e(f"v_sub_f32 v{40+2*w}, v{40+2*w}, v6")
    e(f"v_mul_f32 v{40+2*w}, {LOG2E}, v{40+2*w}")
    e(f"v_exp_f32 v{40+2*w}, v{40+2*w}")
g.nop(1)
e("v_mul_f32 v7, v40, v41")
for w in range(1, 8):
    e(f"v_fma_f32 v7, v{40+2*w}, v{41+2*w}, v7")
e("v_mul_f32 v8, v40, v64")
for w in range(1, 8):
    e(f"v_fma_f32 v8, v{40+2*w}, v{64+w}, v8")
e("v_rcp_f32 v7, v7")
g.nop(1)
e("v_mul_f32 v8, v8, v7")
rnd(8, 8)
e("v_lshlrev_b32 v5, 2, v1")
e(f"ds_write_b32 v5, v8 offset:{OFIN_OFF}")
full_exec()
e("s_waitcnt lgkmcnt(0)")
g.lab("L_sync1_done")
e("s_barrier")
e("v_lshlrev_b32 v5, 4, v138")
e(f"ds_read_b128 v[6:9], v5 offset:{OFIN_OFF}")
e("v_lshlrev_b32 v5, 2, v138")
e(f"ds_read_b32 v10, v5 offset:{H_OFF}")
for k in range(40, 56):
    e(f"v_mov_b32 v{k}, 0")
e("s_waitcnt lgkmcnt(0)")
for i in range(4):
    e(f"v_lshrrev_b32 v14, 16, v{6+i}")
    for d in range(4):
        e(f"v_dot2_f32_bf16 v{40+2*d}, v{144+4*i+d}, v14, v{40+2*d}")
        e(f"v_dot2_f32_bf16 v{41+2*d}, v{144+4*i+d}, v{6+i}, v{41+2*d}")
e("v_lshrrev_b32 v14, 16, v10")
for d in range(4):
    e(f"v_dot2_f32_bf16 v{48+2*d}, v{140+d}, v14, v{48+2*d}")
    e(f"v_dot2_f32_bf16 v{49+2*d}, v{140+d}, v10, v{49+2*d}")
e("v_mul_u32_u24 v5, 2560, v138")
e("v_lshlrev_b32 v6, 5, v139")
e("v_add_u32 v5, v5, v6")
e("v_cmp_gt_u32 vcc, 480, v0")
e("s_and_saveexec_b64 s[86:87], vcc")
g.nop(2)
e(f"ds_write_b128 v5, v[40:43] offset:{S2_OFF}")
e(f"ds_write_b128 v5, v[44:47] offset:{S2_OFF+16}")
e(f"ds_write_b128 v5, v[48:51] offset:{S2_OFF+15360}")
e(f"ds_write_b128 v5, v[52:55] offset:{S2_OFF+15360+16}")
full_exec()
e("s_waitcnt lgkmcnt(0)")
e("s_barrier")
e("s_cmp_ge_u32 s70, 5")
e("s_cbranch_scc1 L_s2_done")
e("v_cmp_le_u32 vcc, 160, v0")
e("v_subrev_u32 v6, 160, v0")
g.nop(1)
e("v_cndmask_b32 v6, v0, v6, vcc")
e("v_cndmask_b32 v7, 0, 1, vcc")
e("v_mul_u32_u24 v5, 15360, v7")
e("v_lshlrev_b32 v8, 4, v6")
e("v_add_u32 v5, v5, v8")
for rg in range(6):
    e(f"ds_read_b128 v[{40+4*rg}:{43+4*rg}], v5 offset:{S2_OFF + 2560*rg}")
e("s_waitcnt lgkmcnt(0)")
for rg in range(1, 6):
    for k in range(4):
        e(f"v_add_f32 v{40+k}, v{40+k}, v{40+4*rg+k}")
e(f"v_mov_b32 v9, {WS_M - WS_S}")
e("v_mul_lo_u32 v9, v9, v7")
e("v_add_u32 v9, v9, v8")
e("s_mul_i32 s72, s2, 2560")
e(f"s_add_u32 s72, s72, {WS_S}")
e("v_add_u32 v9, s72, v9")
e("global_store_dwordx4 v9, v[40:43], s[28:29] sc1")
g.lab("L_s2_done")
e("s_waitcnt vmcnt(0)")
e("s_barrier")
e("s_cmp_lg_u32 s70, 0")
e("s_cbranch_scc1 L_sync2_done")
set_exec("1", "0")
e("v_mov_b32 v5, 128")
e("v_mov_b32 v6, 1")
e("global_atomic_add v5, v6, s[26:27] sc1")
e("s_cmp_ge_u32 s2, 160")
e("s_cbranch_scc1 L_poll2_done")
e("s_mov_b32 s74, 0")
g.lab("L_poll2")
e("global_load_dword v6, v5, s[26:27] sc1")
e("s_waitcnt vmcnt(0)")
e("v_readfirstlane_b32 s75, v6")
e("s_add_u32 s74, s74, 1")
g.nop(2)
e("s_cmp_ge_u32 s75, 256")
e("s_cbranch_scc1 L_poll2_done")
e("s_cmp_ge_u32 s74, 0x40000")
e("s_cbranch_scc1 L_poll2_done")
e("s_sleep 1")
e("s_branch L_poll2")
g.lab("L_poll2_done")
full_exec()
g.lab("L_sync2_done")
e("s_cmp_ge_u32 s2, 160")
e("s_cbranch_scc1 L_end")
e("s_barrier")
e("v_lshrrev_b32 v7, 8, v0")
e("v_and_b32 v6, 255, v0")
e("v_mul_u32_u24 v6, 2560, v6")
e(f"v_mov_b32 v9, {WS_M - WS_S}")
e("v_mul_lo_u32 v9, v9, v7")
e("v_add_u32 v9, v9, v6")
e("s_lshl_b32 s72, s2, 4")
e(f"s_add_u32 s72, s72, {WS_S}")
e("v_add_u32 v9, s72, v9")
e("global_load_dwordx4 v[40:43], v9, s[28:29] sc1")
e("s_lshl_b32 s72, s2, 2")
e("v_add_u32 v5, s72, v1")
e("v_lshlrev_b32 v5, 1, v5")
e("buffer_load_ushort v44, v5, s[56:59], 0 offen")
e("buffer_load_ushort v45, v5, s[64:67], 0 offen")
e("s_waitcnt vmcnt(0)")
dpp_reduce("v_add_f32", [40, 41, 42, 43])
e("s_lshl_b32 s72, s70, 4")
e("v_mov_b32 v6, s72")
set_exec("0", "0x80000000")
e(f"ds_write_b128 v6, v[40:43] offset:{RED_OFF}")
full_exec()
e("s_waitcnt lgkmcnt(0)")
e("s_barrier")
e("s_cmp_lg_u32 s70, 0")
e("s_cbranch_scc1 L_end")
set_exec("0xf", "0")
e("v_lshlrev_b32 v6, 2, v1")
for w in range(8):
    e(f"ds_read_b32 v{48+w}, v6 offset:{RED_OFF + 16*w}")
e("s_waitcnt lgkmcnt(0)")
e("v_add_f32 v48, v48, v49")
e("v_add_f32 v50, v50, v51")
e("v_add_f32 v48, v48, v50")
e("v_add_f32 v52, v52, v53")
e("v_add_f32 v54, v54, v55")
e("v_add_f32 v52, v52, v54")
rnd(48, 48)
rnd(52, 52)
e("v_lshlrev_b32 v45, 16, v45")
e("v_add_f32 v52, v52, v45")
rnd(52, 52)
e(f"v_mul_f32 v53, {f32(-1.4426950408889634)}, v52")
e("v_exp_f32 v53, v53")
g.nop(1)
e("v_add_f32 v53, 1.0, v53")
e("v_rcp_f32 v53, v53")
g.nop(1)
e("v_mul_f32 v52, v52, v53")
rnd(52, 52)
e("v_mul_f32 v48, v48, v52")
rnd(48, 48)
e("v_lshlrev_b32 v44, 16, v44")
e("v_add_f32 v48, v44, v48")
e("v_cvt_pk_bf16_f32 v48, v48, v48")
e("global_store_short v5, v48, s[24:25]")
full_exec()
g.lab("L_end")
e("s_endpgm")

hdr = open(f"cdna_kernels/{NAME}.s.ref").read().split("; Override launch")[0]
txt = hdr + f"""; Override launch geometry by editing the next line (default: block=256,
; grid=ceil(out_elems/256), lds=0). Harness parses it; keep it on one line.
; @launch grid=(256,1,1) block=(512,1,1) lds={LDS_BYTES}
.amdgcn_target "amdgcn-amd-amdhsa--gfx950"
.text
.globl {NAME}_kernel
.p2align 8
.type {NAME}_kernel,@function
{NAME}_kernel:
""" + "\n".join(g.L) + f"""
.section .rodata,"a"
.p2align 6
.amdhsa_kernel {NAME}_kernel
  .amdhsa_next_free_vgpr 256
  .amdhsa_next_free_sgpr 96
  .amdhsa_accum_offset 256
  .amdhsa_group_segment_fixed_size 0
  .amdhsa_kernarg_size 104
  .amdhsa_user_sgpr_count 2
  .amdhsa_user_sgpr_kernarg_segment_ptr 1
  .amdhsa_system_sgpr_workgroup_id_x 1
.end_amdhsa_kernel
"""
open(OUT, "w").write(txt)
print("wrote", OUT, len(g.L), "lines")
assert all((t * 52429) >> 22 == t // 80 for t in range(512))
```

```python
import struct, sys, math

NAME = "recurrent_scan__gqa_block_cached__mixer_channel_mlp__decode"
OUT = sys.argv[1] if len(sys.argv) > 1 else f"cdna_kernels/{NAME}.s"
OPTS = set(sys.argv[2:])
NT = "nt" in OPTS
STAMPS = "stamps" in OPTS
WS_STAMP = 0x200000

def f32(x):
    return "0x%08x" % struct.unpack("<I", struct.pack("<f", x))[0]

LOG2E = f32(1.4426950408889634)
SCALE = f32(192 ** -0.5)
INV640 = f32(1.0 / 640.0)
EPS = f32(1e-5)

XN_OFF = 0
Y_OFF = 2560
QPART_OFF = 5120
HPART_OFF = 17408
QBF_OFF = 17664
H_OFF = 18048
ML_OFF = 18080
OFIN_OFF = 18144
RED_OFF = 18240
S2_OFF = 18432
LDS_BYTES = S2_OFF + 2 * 6 * 2560
WS_PART = 0
WS_S = 0x40000
WS_M = 0x100000

class G:
    def __init__(s):
        s.L = []
        s.vm = []
    def e(s, t):
        s.L.append("    " + t)
    def c(s, t):
        s.L.append("    ; " + t)
    def lab(s, t):
        s.L.append(t + ":")
    def vmem(s, t, tag):
        s.e(t)
        s.vm.append(tag)
    def wait_tag(s, tag):
        idx = max(i for i, t in enumerate(s.vm) if t == tag)
        n = min(len(s.vm) - 1 - idx, 63)
        s.e(f"s_waitcnt vmcnt({n})")
    def nop(s, n):
        while n > 0:
            k = min(n, 16)
            s.e(f"s_nop {k-1}")
            n -= k

g = G()
e = g.e

def rnd(dst, src):
    e(f"v_cvt_pk_bf16_f32 v{dst}, v{src}, v{src}")
    e(f"v_and_b32 v{dst}, 0xffff0000, v{dst}")

def dpp_reduce(op, regs):
    steps = ["row_shr:1 row_mask:0xf bank_mask:0xf", "row_shr:2 row_mask:0xf bank_mask:0xf",
             "row_shr:4 row_mask:0xf bank_mask:0xf", "row_shr:8 row_mask:0xf bank_mask:0xf",
             "row_bcast:15 row_mask:0xa bank_mask:0xf", "row_bcast:31 row_mask:0xc bank_mask:0xf"]
    for st in steps:
        if len(regs) < 3:
            g.nop(2)
        for r in regs:
            e(f"{op}_dpp v{r}, v{r}, v{r} {st}")

def reduce_to_sgpr(op, r, sd):
    dpp_reduce(op, [r])
    g.nop(1)
    e(f"v_readlane_b32 s{sd}, v{r}, 63")
    g.nop(2)

def set_exec(lo, hi):
    e(f"s_mov_b32 exec_lo, {lo}")
    e(f"s_mov_b32 exec_hi, {hi}")

def full_exec():
    e("s_mov_b64 exec, -1")

ntf = " nt" if NT else ""
def stamp(i):
    if STAMPS:
        e("s_memrealtime s[100:101]")
        e("s_waitcnt lgkmcnt(0)")
        e(f"s_mov_b32 s{88+i}, s100")

e("s_cmp_ge_u32 s2, 256")
e("s_cbranch_scc1 L_end")
stamp(0)
e("s_load_dwordx16 s[4:19], s[0:1], 0")
e("s_load_dwordx8 s[20:27], s[0:1], 64")
e("s_load_dwordx2 s[28:29], s[0:1], 96")
e("v_and_b32 v1, 63, v0")
e("v_lshrrev_b32 v5, 6, v0")
g.nop(1)
e("v_readfirstlane_b32 s70, v5")
e("s_and_b32 s68, s2, 7")
e("s_lshl_b32 s68, s68, 2")
e("s_lshr_b32 s69, s2, 3")
e("s_and_b32 s69, s69, 3")
e("s_add_u32 s68, s68, s69")
e("s_lshr_b32 s69, s2, 5")
e("s_mov_b32 s80, 0xffff0000")
e("s_mov_b32 s81, 0")
e("s_mov_b32 s82, 0")
e("s_mov_b32 s83, 0x0000ffff")
e("s_mov_b32 s84, 0")
e("s_mov_b32 s85, 0xffff0000")
e("v_and_b32 v6, 15, v1")
e("v_mul_u32_u24 v2, 384, v6")
e("v_lshrrev_b32 v6, 4, v1")
e("v_lshlrev_b32 v6, 4, v6")
e("v_add_u32 v2, v2, v6")
e("v_lshrrev_b32 v7, 5, v1")
e("v_and_b32 v8, 31, v1")
e("v_mul_u32_u24 v3, 384, v7")
e("v_mul_u32_u24 v6, 12, v8")
e("v_add_u32 v3, v3, v6")
e("s_waitcnt lgkmcnt(0)")
def srd(base, ptr, nbytes):
    e(f"s_mov_b32 s{base}, s{ptr}")
    e(f"s_and_b32 s{base+1}, s{ptr+1}, 0xffff")
    e(f"s_mov_b32 s{base+2}, {nbytes}")
    e(f"s_mov_b32 s{base+3}, 0x00020000")
srd(56, 4, 1280)
srd(32, 6, 100663296)
srd(36, 8, 100663296)
srd(40, 10, 7864320)
srd(44, 12, 7864320)
srd(48, 16, 1966080)
srd(60, 18, 3072)
srd(52, 20, 1966080)
srd(64, 22, 1280)

e("v_lshlrev_b32 v5, 2, v1")
for r in range(5):
    g.vmem(f"buffer_load_dword v{47+r}, v5, s[56:59], 0 offen offset:{256*r}", "x")
e("s_mul_i32 s71, s70, 80")
e("v_lshlrev_b32 v6, 1, v1")
e("v_add_u32 v6, s71, v6")
e("v_mul_u32_u24 v6, 3072, v6")
e("s_mul_i32 s72, s2, 12")
e("v_add_u32 v6, s72, v6")
g.vmem("buffer_load_dwordx3 v[40:42], v6, s[48:51], 0 offen", "w1")
g.vmem("buffer_load_dwordx3 v[44:46], v6, s[48:51], 0 offen offset:3072", "w1")
e("v_add_u32 v4, s71, v7")
e("v_mov_b32 v9, 12288")
e("v_mul_lo_u32 v4, v4, v9")
e("v_mul_u32_u24 v6, 12, v8")
e("v_add_u32 v4, v4, v6")
e("s_mul_i32 s72, s68, 384")
e("v_add_u32 v4, s72, v4")
def wq_reg(i):
    if i < 24: return 160 + 4 * i
    if i < 30: return 16 + 4 * (i - 24)
    return 112 + 4 * (i - 30)
e("s_mov_b32 s72, 0")
for i in range(40):
    r = wq_reg(i)
    g.vmem(f"buffer_load_dwordx3 v[{r}:{r+2}], v4, s[40:43], s72 offen", f"wq{i//8}")
    if i != 39:
        e("s_add_u32 s72, s72, 24576")
e("s_mul_i32 s73, s68, 3145728")
e("s_mul_i32 s74, s69, 393216")
e("s_add_u32 s73, s73, s74")
e("s_mul_i32 s74, s70, 49152")
e("s_add_u32 s73, s73, s74")
def k_loads(tile, blocks=(0, 1, 2, 3)):
    for b in blocks:
        e(f"s_add_u32 s72, s73, {tile*24576 + b*6144}")
        for j in range(6):
            r = 64 + 4 * (6 * b + j)
            g.vmem(f"buffer_load_dwordx4 v[{r}:{r+3}], v2, s[32:35], s72 offen offset:{64*j}{ntf}", f"K{tile}_{b}")
def v_group(grp):
    for k in range(8):
        if k % 4 == 0:
            e(f"s_add_u32 s72, s73, {(8*grp+k)*768}")
        r = 160 + 32 * (grp % 3) + 4 * k
        g.vmem(f"buffer_load_dwordx3 v[{r}:{r+2}], v3, s[36:39], s72 offen offset:{768*(k%4)}{ntf}", f"V{grp}")
k_loads(0, (0, 1))

g.wait_tag("x")
for r in range(5):
    e(f"v_lshlrev_b32 v{52+2*r}, 16, v{47+r}")
    e(f"v_and_b32 v{53+2*r}, 0xffff0000, v{47+r}")
def layernorm(lds_off):
    e("v_add_f32 v43, v52, v53")
    for k in range(54, 62):
        e(f"v_add_f32 v43, v43, v{k}")
    reduce_to_sgpr("v_add_f32", 43, 74)
    e(f"v_mov_b32 v62, {INV640}")
    e("v_mul_f32 v62, s74, v62")
    e("v_sub_f32 v63, v52, v62")
    e("v_mul_f32 v43, v63, v63")
    for k in range(53, 62):
        e(f"v_sub_f32 v63, v{k}, v62")
        e("v_fma_f32 v43, v63, v63, v43")
    reduce_to_sgpr("v_add_f32", 43, 75)
    e(f"v_mov_b32 v63, {INV640}")
    e("v_mul_f32 v63, s75, v63")
    rnd(62, 62)
    rnd(63, 63)
    e(f"v_add_f32 v63, {EPS}, v63")
    rnd(63, 63)
    e("v_sqrt_f32 v63, v63")
    g.nop(1)
    rnd(63, 63)
    e("v_rcp_f32 v63, v63")
    g.nop(1)
    for k in range(52, 62):
        e(f"v_sub_f32 v{k}, v{k}, v62")
        rnd(k, k)
        e(f"v_mul_f32 v{k}, v{k}, v63")
        rnd(k, k)
    e("v_lshlrev_b32 v5, 3, v1")
    for r in range(5):
        e(f"ds_write_b64 v5, v[{52+2*r}:{53+2*r}] offset:{lds_off + 512*r}")
layernorm(XN_OFF)
layernorm(Y_OFF)
e("s_waitcnt lgkmcnt(0)")
stamp(1)

for k in range(10, 16):
    e(f"v_mov_b32 v{k}, 0")
e("v_lshlrev_b32 v5, 1, v1")
e("v_add_u32 v5, s71, v5")
e("v_lshlrev_b32 v5, 2, v5")
set_exec("-1", "0xff")
e(f"ds_read_b64 v[6:7], v5 offset:{Y_OFF}")
g.wait_tag("w1")
e("s_waitcnt lgkmcnt(0)")
e("v_lshrrev_b32 v8, 16, v6")
e("v_lshrrev_b32 v9, 16, v7")
for d in range(3):
    e(f"v_dot2_f32_bf16 v{10+2*d}, v{40+d}, v8, v{10+2*d}")
    e(f"v_dot2_f32_bf16 v{11+2*d}, v{40+d}, v6, v{11+2*d}")
for d in range(3):
    e(f"v_dot2_f32_bf16 v{10+2*d}, v{44+d}, v9, v{10+2*d}")
    e(f"v_dot2_f32_bf16 v{11+2*d}, v{44+d}, v7, v{11+2*d}")
full_exec()
g.nop(4)
dpp_reduce("v_add_f32", list(range(10, 16)))
e("s_lshl_b32 s72, s70, 5")
e("v_mov_b32 v5, s72")
set_exec("0", "0x80000000")
e(f"ds_write_b64 v5, v[10:11] offset:{HPART_OFF}")
e(f"ds_write_b64 v5, v[12:13] offset:{HPART_OFF+8}")
e(f"ds_write_b64 v5, v[14:15] offset:{HPART_OFF+16}")
full_exec()

for k in range(56, 62):
    e(f"v_mov_b32 v{k}, 0")
e("v_lshrrev_b32 v5, 5, v1")
e("v_add_u32 v5, s71, v5")
e("v_lshlrev_b32 v5, 2, v5")
for i in range(40):
    e(f"ds_read_b32 v{wq_reg(i)+3}, v5 offset:{XN_OFF + 8*i}")
e("s_waitcnt lgkmcnt(0)")
for grp in range(5):
    g.wait_tag(f"wq{grp}")
    for k in range(8):
        i = 8 * grp + k
        r = wq_reg(i)
        e(f"v_lshrrev_b32 v14, 16, v{r+3}")
        for d in range(3):
            e(f"v_dot2_f32_bf16 v{56+2*d}, v{r+d}, v14, v{56+2*d}")
            e(f"v_dot2_f32_bf16 v{57+2*d}, v{r+d}, v{r+3}, v{57+2*d}")
stamp(2)
e("v_lshrrev_b32 v6, 5, v1")
e("s_lshl_b32 s72, s70, 1")
e("v_add_u32 v6, s72, v6")
e("v_mul_u32_u24 v6, 768, v6")
e("v_and_b32 v7, 31, v1")
e("v_mul_u32_u24 v7, 24, v7")
e("v_add_u32 v13, v6, v7")
g.nop(3)
e(f"ds_write_b64 v13, v[56:57] offset:{QPART_OFF}")
e(f"ds_write_b64 v13, v[58:59] offset:{QPART_OFF+8}")
e(f"ds_write_b64 v13, v[60:61] offset:{QPART_OFF+16}")
e("s_mul_i32 s72, s2, 6")
e("v_add_u32 v6, s72, v1")
e("v_lshlrev_b32 v6, 1, v6")
k_loads(0, (2, 3))
g.vmem("buffer_load_ushort v15, v6, s[60:63], 0 offen", "b1")
v_group(0)
v_group(1)
v_group(2)
e("s_waitcnt lgkmcnt(0)")
e("s_barrier")
e("s_cmp_ge_u32 s70, 3")
e("s_cbranch_scc1 L_qred_h")
e("v_lshlrev_b32 v5, 2, v0")
for k in range(16):
    e(f"ds_read_b32 v{40+k}, v5 offset:{QPART_OFF + 768*k}")
e("s_waitcnt lgkmcnt(0)")
for st in (8, 4, 2, 1):
    for k in range(st):
        e(f"v_add_f32 v{40+k}, v{40+k}, v{40+k+st}")
e("v_cvt_pk_bf16_f32 v40, v40, v40")
e("v_lshlrev_b32 v5, 1, v0")
e(f"ds_write_b16 v5, v40 offset:{QBF_OFF}")
e("s_branch L_qred_done")
g.lab("L_qred_h")
e("s_cmp_lg_u32 s70, 3")
e("s_cbranch_scc1 L_qred_done")
set_exec("0x3f", "0")
e("v_lshlrev_b32 v5, 2, v1")
for k in range(8):
    e(f"ds_read_b32 v{40+k}, v5 offset:{HPART_OFF + 32*k}")
g.wait_tag("b1")
e("s_waitcnt lgkmcnt(0)")
for st in (4, 2, 1):
    for k in range(st):
        e(f"v_add_f32 v{40+k}, v{40+k}, v{40+k+st}")
rnd(40, 40)
e("v_lshlrev_b32 v41, 16, v15")
e("v_add_f32 v40, v40, v41")
rnd(40, 40)
e("v_mul_f32 v41, v40, v40")
e(f"v_mov_b32 v42, {f32(0.044715)}")
e("v_fma_f32 v41, v41, v42, 1.0")
e("v_mul_f32 v41, v41, v40")
e(f"v_mul_f32 v41, {f32(2.0 * math.sqrt(2.0 / math.pi) * 1.4426950408889634)}, v41")
e("v_exp_f32 v41, v41")
g.nop(1)
e("v_add_f32 v41, 1.0, v41")
e("v_rcp_f32 v41, v41")
g.nop(1)
e("v_fma_f32 v40, -v40, v41, v40")
rnd(40, 40)
e(f"ds_write_b32 v5, v40 offset:{H_OFF}")
full_exec()
g.lab("L_qred_done")
e("s_waitcnt lgkmcnt(0)")
e("s_barrier")
stamp(3)
e("v_lshrrev_b32 v5, 4, v1")
e("v_lshlrev_b32 v5, 4, v5")
for j in range(6):
    e(f"ds_read_b128 v[{16+4*j}:{19+4*j}], v5 offset:{QBF_OFF + 64*j}")
e("v_lshrrev_b32 v5, 5, v1")
e("v_lshlrev_b32 v5, 2, v5")
for k in range(56, 62):
    e(f"v_mov_b32 v{k}, 0")
e("s_waitcnt lgkmcnt(0)")

def qk(tile):
    for b in range(4):
        g.wait_tag(f"K{tile}_{b}")
        for j in range(6):
            r = 64 + 4 * (6 * b + j)
            c = "0" if j == 0 else f"v[{40+4*b}:{43+4*b}]"
            e(f"v_mfma_f32_16x16x32_bf16 v[{40+4*b}:{43+4*b}], v[{16+4*j}:{19+4*j}], v[{r}:{r+3}], {c}")
    g.nop(10)
    e("v_cndmask_b32 v62, v40, v44, s[80:81]")
    e("v_cndmask_b32 v62, v62, v48, s[82:83]")
    e("v_cndmask_b32 v62, v62, v52, s[84:85]")
    rnd(62, 62)
    e(f"v_mul_f32 v62, {SCALE}, v62")
    rnd(62, 62)
    e("v_mov_b32 v63, v62")
    reduce_to_sgpr("v_max_f32", 63, 76)
def softmax(tile):
    if tile == 0:
        e("s_mov_b32 s77, s76")
        e("v_subrev_f32 v62, s77, v62")
        e(f"v_mul_f32 v62, {LOG2E}, v62")
        e("v_exp_f32 v62, v62")
        g.nop(1)
        e("v_mov_b32 v12, v62")
    else:
        e("v_mov_b32 v6, s76")
        e("v_max_f32 v6, s77, v6")
        g.nop(1)
        e("v_readfirstlane_b32 s78, v6")
        e("v_sub_f32 v6, s77, v6")
        e(f"v_mul_f32 v6, {LOG2E}, v6")
        e("v_exp_f32 v6, v6")
        e("s_mov_b32 s77, s78")
        g.nop(2)
        e("v_subrev_f32 v62, s77, v62")
        e(f"v_mul_f32 v62, {LOG2E}, v62")
        e("v_exp_f32 v62, v62")
        for k in range(56, 62):
            e(f"v_mul_f32 v{k}, v{k}, v6")
        e("v_fma_f32 v12, v12, v6, v62")
    rnd(62, 62)
def pv(grp):
    base = 160 + 32 * (grp % 3)
    for k in range(8):
        e(f"ds_bpermute_b32 v{base+4*k+3}, v5, v62 offset:{8*(8*(grp%4)+k)}")
    g.wait_tag(f"V{grp}")
    e("s_waitcnt lgkmcnt(0)")
    for k in range(8):
        r = base + 4 * k
        e(f"v_lshrrev_b32 v14, 16, v{r+3}")
        for d in range(3):
            e(f"v_dot2_f32_bf16 v{56+2*d}, v{r+d}, v14, v{56+2*d}")
            e(f"v_dot2_f32_bf16 v{57+2*d}, v{r+d}, v{r+3}, v{57+2*d}")
    if grp + 3 < 8:
        v_group(grp + 3)

qk(0)
stamp(4)
k_loads(1)
softmax(0)
for gg in range(4):
    pv(gg)
stamp(5)
qk(1)
stamp(6)
e("v_mov_b32 v7, 52429")
e("v_mul_u32_u24 v7, v0, v7")
e("v_lshrrev_b32 v7, 22, v7")
e("v_mul_u32_u24 v8, 80, v7")
e("v_sub_u32 v8, v0, v8")
e("v_lshlrev_b32 v9, 2, v7")
e("s_mul_i32 s72, s68, 192")
e("s_mul_i32 s74, s69, 24")
e("s_add_u32 s72, s72, s74")
e("v_add_u32 v9, s72, v9")
e("v_mul_u32_u24 v9, 1280, v9")
e("v_lshlrev_b32 v10, 4, v8")
e("v_add_u32 v9, v9, v10")
for i in range(4):
    g.vmem(f"buffer_load_dwordx4 v[{144+4*i}:{147+4*i}], v9, s[44:47], 0 offen offset:{1280*i}", "wo")
e("s_mul_i32 s72, s2, 6")
e("v_add_u32 v9, s72, v7")
e("v_mul_u32_u24 v9, 1280, v9")
e("v_add_u32 v9, v9, v10")
g.vmem("buffer_load_dwordx4 v[140:143], v9, s[52:55], 0 offen", "w2")
e("v_mov_b32 v138, v7")
e("v_mov_b32 v139, v8")
softmax(1)
for gg in range(4, 8):
    pv(gg)

stamp(7)
reduce_to_sgpr("v_add_f32", 12, 79)
e(f"ds_write_b64 v13, v[56:57] offset:{QPART_OFF}")
e(f"ds_write_b64 v13, v[58:59] offset:{QPART_OFF+8}")
e(f"ds_write_b64 v13, v[60:61] offset:{QPART_OFF+16}")
e("v_mov_b32 v6, s77")
e("v_mov_b32 v7, s79")
e("s_lshl_b32 s72, s70, 3")
e("v_mov_b32 v5, s72")
set_exec("1", "0")
e(f"ds_write_b64 v5, v[6:7] offset:{ML_OFF}")
full_exec()
e("s_waitcnt lgkmcnt(0)")
e("s_barrier")
e("s_cmp_ge_u32 s70, 3")
e("s_cbranch_scc1 L_comb_done")
e("v_mov_b32 v5, 0")
for w in range(8):
    e(f"ds_read_b64 v[{40+2*w}:{41+2*w}], v5 offset:{ML_OFF + 8*w}")
e("v_lshlrev_b32 v5, 2, v0")
for k in range(16):
    e(f"ds_read_b32 v{64+k}, v5 offset:{QPART_OFF + 768*k}")
e("s_waitcnt lgkmcnt(0)")
e("v_max_f32 v6, v40, v42")
for w in range(2, 8):
    e(f"v_max_f32 v6, v6, v{40+2*w}")
for w in range(8):
    e(f"v_sub_f32 v{40+2*w}, v{40+2*w}, v6")
    e(f"v_mul_f32 v{40+2*w}, {LOG2E}, v{40+2*w}")
    e(f"v_exp_f32 v{40+2*w}, v{40+2*w}")
g.nop(1)
e("v_mul_f32 v7, v40, v41")
for w in range(1, 8):
    e(f"v_fma_f32 v7, v{40+2*w}, v{41+2*w}, v7")
for w in range(8):
    e(f"v_add_f32 v{64+2*w}, v{64+2*w}, v{65+2*w}")
e("v_mul_f32 v8, v40, v64")
for w in range(1, 8):
    e(f"v_fma_f32 v8, v{40+2*w}, v{64+2*w}, v8")
e("s_lshl_b32 s72, s68, 3")
e("s_add_u32 s72, s72, s69")
e("s_lshl_b32 s72, s72, 10")
e("v_add_u32 v9, s72, v5")
e(f"global_store_dword v9, v8, s[28:29] offset:{WS_PART} sc1")
e("s_cmp_lg_u32 s70, 0")
e("s_cbranch_scc1 L_comb_done")
set_exec("1", "0")
e(f"global_store_dwordx2 v9, v[6:7], s[28:29] offset:{WS_PART+768} sc1")
full_exec()
g.lab("L_comb_done")
e("s_waitcnt vmcnt(0)")
e("s_barrier")
e("s_cmp_lg_u32 s70, 0")
e("s_cbranch_scc1 L_sync1_done")
set_exec("1", "0")
e("s_lshl_b32 s72, s68, 2")
e("v_mov_b32 v5, s72")
e("v_mov_b32 v6, 1")
e("global_atomic_add v5, v6, s[26:27] sc1")
e("s_mov_b32 s74, 0")
g.lab("L_poll1")
e("global_load_dword v6, v5, s[26:27] sc1")
e("s_waitcnt vmcnt(0)")
e("v_readfirstlane_b32 s75, v6")
e("s_add_u32 s74, s74, 1")
g.nop(2)
e("s_cmp_ge_u32 s75, 8")
e("s_cbranch_scc1 L_poll1_done")
e("s_cmp_ge_u32 s74, 0x40000")
e("s_cbranch_scc1 L_poll1_done")
e("s_sleep 1")
e("s_branch L_poll1")
g.lab("L_poll1_done")
full_exec()
e("s_lshl_b32 s72, s68, 13")
e("s_mul_i32 s74, s69, 96")
e("s_add_u32 s74, s74, s72")
e("v_lshlrev_b32 v5, 2, v1")
e("v_add_u32 v5, s74, v5")
e("v_mov_b32 v6, s72")
set_exec("0xffffff", "0")
for cc in range(8):
    e(f"v_add_u32 v7, {1024*cc}, v5")
    e(f"global_load_dword v{64+cc}, v7, s[28:29] offset:{WS_PART} sc1")
    e(f"v_add_u32 v8, {1024*cc}, v6")
    e(f"global_load_dwordx2 v[{40+2*cc}:{41+2*cc}], v8, s[28:29] offset:{WS_PART+768} sc1")
e("s_waitcnt vmcnt(0)")
e("v_max_f32 v6, v40, v42")
for w in range(2, 8):
    e(f"v_max_f32 v6, v6, v{40+2*w}")
for w in range(8):
    e(f"v_sub_f32 v{40+2*w}, v{40+2*w}, v6")
    e(f"v_mul_f32 v{40+2*w}, {LOG2E}, v{40+2*w}")
    e(f"v_exp_f32 v{40+2*w}, v{40+2*w}")
g.nop(1)
e("v_mul_f32 v7, v40, v41")
for w in range(1, 8):
    e(f"v_fma_f32 v7, v{40+2*w}, v{41+2*w}, v7")
e("v_mul_f32 v8, v40, v64")
for w in range(1, 8):
    e(f"v_fma_f32 v8, v{40+2*w}, v{64+w}, v8")
e("v_rcp_f32 v7, v7")
g.nop(1)
e("v_mul_f32 v8, v8, v7")
rnd(8, 8)
e("v_lshlrev_b32 v5, 2, v1")
e(f"ds_write_b32 v5, v8 offset:{OFIN_OFF}")
full_exec()
e("s_waitcnt lgkmcnt(0)")
g.lab("L_sync1_done")
e("s_barrier")
stamp(8)
e("v_lshlrev_b32 v5, 4, v138")
e(f"ds_read_b128 v[6:9], v5 offset:{OFIN_OFF}")
e("v_lshlrev_b32 v5, 2, v138")
e(f"ds_read_b32 v10, v5 offset:{H_OFF}")
for k in range(40, 56):
    e(f"v_mov_b32 v{k}, 0")
e("s_waitcnt lgkmcnt(0)")
for i in range(4):
    e(f"v_lshrrev_b32 v14, 16, v{6+i}")
    for d in range(4):
        e(f"v_dot2_f32_bf16 v{40+2*d}, v{144+4*i+d}, v14, v{40+2*d}")
        e(f"v_dot2_f32_bf16 v{41+2*d}, v{144+4*i+d}, v{6+i}, v{41+2*d}")
e("v_lshrrev_b32 v14, 16, v10")
for d in range(4):
    e(f"v_dot2_f32_bf16 v{48+2*d}, v{140+d}, v14, v{48+2*d}")
    e(f"v_dot2_f32_bf16 v{49+2*d}, v{140+d}, v10, v{49+2*d}")
e("v_mul_u32_u24 v5, 2560, v138")
e("v_lshlrev_b32 v6, 5, v139")
e("v_add_u32 v5, v5, v6")
e("v_cmp_gt_u32 vcc, 480, v0")
e("s_and_saveexec_b64 s[86:87], vcc")
g.nop(2)
e(f"ds_write_b128 v5, v[40:43] offset:{S2_OFF}")
e(f"ds_write_b128 v5, v[44:47] offset:{S2_OFF+16}")
e(f"ds_write_b128 v5, v[48:51] offset:{S2_OFF+15360}")
e(f"ds_write_b128 v5, v[52:55] offset:{S2_OFF+15360+16}")
full_exec()
e("s_waitcnt lgkmcnt(0)")
e("s_barrier")
e("s_cmp_ge_u32 s70, 5")
e("s_cbranch_scc1 L_s2_done")
e("v_cmp_le_u32 vcc, 160, v0")
e("v_subrev_u32 v6, 160, v0")
g.nop(1)
e("v_cndmask_b32 v6, v0, v6, vcc")
e("v_cndmask_b32 v7, 0, 1, vcc")
e("v_mul_u32_u24 v5, 15360, v7")
e("v_lshlrev_b32 v8, 4, v6")
e("v_add_u32 v5, v5, v8")
for rg in range(6):
    e(f"ds_read_b128 v[{40+4*rg}:{43+4*rg}], v5 offset:{S2_OFF + 2560*rg}")
e("s_waitcnt lgkmcnt(0)")
for rg in range(1, 6):
    for k in range(4):
        e(f"v_add_f32 v{40+k}, v{40+k}, v{40+4*rg+k}")
e(f"v_mov_b32 v9, {WS_M - WS_S}")
e("v_mul_lo_u32 v9, v9, v7")
e("v_add_u32 v9, v9, v8")
e("s_mul_i32 s72, s2, 2560")
e(f"s_add_u32 s72, s72, {WS_S}")
e("v_add_u32 v9, s72, v9")
e("global_store_dwordx4 v9, v[40:43], s[28:29] sc1")
g.lab("L_s2_done")
e("s_waitcnt vmcnt(0)")
e("s_barrier")
e("s_cmp_lg_u32 s70, 0")
e("s_cbranch_scc1 L_sync2_done")
set_exec("1", "0")
e("v_mov_b32 v5, 128")
e("v_mov_b32 v6, 1")
e("global_atomic_add v5, v6, s[26:27] sc1")
e("s_cmp_ge_u32 s2, 160")
e("s_cbranch_scc1 L_poll2_done")
e("s_mov_b32 s74, 0")
g.lab("L_poll2")
e("global_load_dword v6, v5, s[26:27] sc1")
e("s_waitcnt vmcnt(0)")
e("v_readfirstlane_b32 s75, v6")
e("s_add_u32 s74, s74, 1")
g.nop(2)
e("s_cmp_ge_u32 s75, 256")
e("s_cbranch_scc1 L_poll2_done")
e("s_cmp_ge_u32 s74, 0x40000")
e("s_cbranch_scc1 L_poll2_done")
e("s_sleep 1")
e("s_branch L_poll2")
g.lab("L_poll2_done")
full_exec()
g.lab("L_sync2_done")
stamp(9)
e("s_cmp_ge_u32 s2, 160")
e("s_cbranch_scc1 L_fin")
e("s_barrier")
stamp(9)
e("v_lshrrev_b32 v7, 8, v0")
e("v_and_b32 v6, 255, v0")
e("v_mul_u32_u24 v6, 2560, v6")
e(f"v_mov_b32 v9, {WS_M - WS_S}")
e("v_mul_lo_u32 v9, v9, v7")
e("v_add_u32 v9, v9, v6")
e("s_lshl_b32 s72, s2, 4")
e(f"s_add_u32 s72, s72, {WS_S}")
e("v_add_u32 v9, s72, v9")
e("global_load_dwordx4 v[40:43], v9, s[28:29] sc1")
e("s_lshl_b32 s72, s2, 2")
e("v_add_u32 v5, s72, v1")
e("v_lshlrev_b32 v5, 1, v5")
e("buffer_load_ushort v44, v5, s[56:59], 0 offen")
e("buffer_load_ushort v45, v5, s[64:67], 0 offen")
e("s_waitcnt vmcnt(0)")
dpp_reduce("v_add_f32", [40, 41, 42, 43])
e("s_lshl_b32 s72, s70, 4")
e("v_mov_b32 v6, s72")
set_exec("0", "0x80000000")
e(f"ds_write_b128 v6, v[40:43] offset:{RED_OFF}")
full_exec()
e("s_waitcnt lgkmcnt(0)")
e("s_barrier")
e("s_cmp_lg_u32 s70, 0")
e("s_cbranch_scc1 L_fin")
set_exec("0xf", "0")
e("v_lshlrev_b32 v6, 2, v1")
for w in range(8):
    e(f"ds_read_b32 v{48+w}, v6 offset:{RED_OFF + 16*w}")
e("s_waitcnt lgkmcnt(0)")
e("v_add_f32 v48, v48, v49")
e("v_add_f32 v50, v50, v51")
e("v_add_f32 v48, v48, v50")
e("v_add_f32 v52, v52, v53")
e("v_add_f32 v54, v54, v55")
e("v_add_f32 v52, v52, v54")
rnd(48, 48)
rnd(52, 52)
e("v_lshlrev_b32 v45, 16, v45")
e("v_add_f32 v52, v52, v45")
rnd(52, 52)
e(f"v_mul_f32 v53, {f32(-1.4426950408889634)}, v52")
e("v_exp_f32 v53, v53")
g.nop(1)
e("v_add_f32 v53, 1.0, v53")
e("v_rcp_f32 v53, v53")
g.nop(1)
e("v_mul_f32 v52, v52, v53")
rnd(52, 52)
e("v_mul_f32 v48, v48, v52")
rnd(48, 48)
e("v_lshlrev_b32 v44, 16, v44")
e("v_add_f32 v48, v44, v48")
e("v_cvt_pk_bf16_f32 v48, v48, v48")
e("global_store_short v5, v48, s[24:25]")
full_exec()
g.lab("L_fin")
if STAMPS:
    stamp(10)
    e("s_lshl_b32 s72, s2, 3")
    e("s_add_u32 s72, s72, s70")
    e("s_lshl_b32 s72, s72, 6")
    e(f"s_add_u32 s72, s72, {WS_STAMP}")
    e("v_mov_b32 v5, s72")
    set_exec("1", "0")
    for i in range(11):
        e(f"v_mov_b32 v6, s{88+i}")
        e(f"global_store_dword v5, v6, s[28:29] offset:{4*i}")
        e("s_waitcnt vmcnt(0)")
    full_exec()
g.lab("L_end")
e("s_endpgm")

hdr = open(f"cdna_kernels/{NAME}.s.ref").read().split("; Override launch")[0]
txt = hdr + f"""; Override launch geometry by editing the next line (default: block=256,
; grid=ceil(out_elems/256), lds=0). Harness parses it; keep it on one line.
; @launch grid=(256,1,1) block=(512,1,1) lds={LDS_BYTES}
.amdgcn_target "amdgcn-amd-amdhsa--gfx950"
.text
.globl {NAME}_kernel
.p2align 8
.type {NAME}_kernel,@function
{NAME}_kernel:
""" + "\n".join(g.L) + f"""
.section .rodata,"a"
.p2align 6
.amdhsa_kernel {NAME}_kernel
  .amdhsa_next_free_vgpr 256
  .amdhsa_next_free_sgpr 102
  .amdhsa_accum_offset 256
  .amdhsa_group_segment_fixed_size 0
  .amdhsa_kernarg_size 104
  .amdhsa_user_sgpr_count 2
  .amdhsa_user_sgpr_kernarg_segment_ptr 1
  .amdhsa_system_sgpr_workgroup_id_x 1
.end_amdhsa_kernel
"""
open(OUT, "w").write(txt)
print("wrote", OUT, len(g.L), "lines")
assert all((t * 52429) >> 22 == t // 80 for t in range(512))
```

```python
import struct, sys, math

NAME = "recurrent_scan__gqa_block_cached__mixer_channel_mlp__decode"
OUT = sys.argv[1] if len(sys.argv) > 1 else f"cdna_kernels/{NAME}.s"
OPTS = set(sys.argv[2:])
NT = "nont" not in OPTS
STAMPS = "stamps" in OPTS

def f32(x):
    return "0x%08x" % struct.unpack("<I", struct.pack("<f", x))[0]

LOG2E = f32(1.4426950408889634)
SCALE = f32(192 ** -0.5)
INV640 = f32(1.0 / 640.0)
EPS = f32(1e-5)

XN_OFF = 0
Y_OFF = 2560
QPART_OFF = 5120
HPART_OFF = 17408
QBF_OFF = 17664
H_OFF = 18048
ML_OFF = 18080
OFIN_OFF = 18144
RED_OFF = 18240
NONCE_OFF = 18400
OSUM_OFF = 18432
OG_OFF = 19456
S2_OFF = 20480
LDS_BYTES = S2_OFF + 2 * 6 * 2560 + 64
WS_Q = 0
WS_O = 0x40000
WS_S = 0x100000
WS_STAMP = 0x400000

class G:
    def __init__(s):
        s.L = []
        s.vm = []
    def e(s, t):
        s.L.append("    " + t)
    def lab(s, t):
        s.L.append(t + ":")
    def vmem(s, t, tag):
        s.e(t)
        s.vm.append(tag)
    def wait_tag(s, tag):
        idx = max(i for i, t in enumerate(s.vm) if t == tag)
        n = min(len(s.vm) - 1 - idx, 63)
        s.e(f"s_waitcnt vmcnt({n})")
    def nop(s, n):
        while n > 0:
            k = min(n, 16)
            s.e(f"s_nop {k-1}")
            n -= k

g = G()
e = g.e

def rnd(dst, src):
    e(f"v_cvt_pk_bf16_f32 v{dst}, v{src}, v{src}")
    e(f"v_and_b32 v{dst}, 0xffff0000, v{dst}")

def dpp_reduce(op, regs):
    steps = ["row_shr:1 row_mask:0xf bank_mask:0xf", "row_shr:2 row_mask:0xf bank_mask:0xf",
             "row_shr:4 row_mask:0xf bank_mask:0xf", "row_shr:8 row_mask:0xf bank_mask:0xf",
             "row_bcast:15 row_mask:0xa bank_mask:0xf", "row_bcast:31 row_mask:0xc bank_mask:0xf"]
    for st in steps:
        if len(regs) < 3:
            g.nop(2)
        for r in regs:
            e(f"{op}_dpp v{r}, v{r}, v{r} {st}")

def reduce_to_sgpr(op, r, sd):
    dpp_reduce(op, [r])
    g.nop(1)
    e(f"v_readlane_b32 s{sd}, v{r}, 63")
    g.nop(2)

def set_exec(lo, hi):
    e(f"s_mov_b32 exec_lo, {lo}")
    e(f"s_mov_b32 exec_hi, {hi}")

def full_exec():
    e("s_mov_b64 exec, -1")

ntf = " nt" if NT else ""
EARLY = "early" in OPTS
def stamp(i, early=False):
    if EARLY and i in (4, 5, 6) and not early:
        return
    if early and not EARLY:
        return
    if STAMPS:
        e("s_memrealtime s[100:101]")
        e("s_waitcnt lgkmcnt(0)")
        e(f"s_mov_b32 s{88+i}, s100")

_poll_id = [0]
def poll_granule(vdst, vaddr, ws_off, tag_src):
    n = _poll_id[0]; _poll_id[0] += 1
    e("s_mov_b32 s74, 0")
    g.lab(f"L_poll{n}")
    e(f"global_load_dwordx4 v[{vdst}:{vdst+3}], v{vaddr}, s[28:29] offset:{ws_off} sc1")
    e("s_waitcnt vmcnt(0)")
    e(f"v_cmp_ne_u32 vcc, {tag_src}, v{vdst+3}")
    e("s_add_u32 s74, s74, 1")
    g.nop(4)
    e(f"s_cbranch_vccz L_poll{n}_done")
    e("s_cmp_ge_u32 s74, 0x40000")
    e(f"s_cbranch_scc1 L_poll{n}_done")
    e("s_sleep 1")
    e(f"s_branch L_poll{n}")
    g.lab(f"L_poll{n}_done")

e("s_cmp_ge_u32 s2, 256")
e("s_cbranch_scc1 L_end")
stamp(0)
e("s_load_dwordx16 s[4:19], s[0:1], 0")
e("s_load_dwordx8 s[20:27], s[0:1], 64")
e("s_load_dwordx2 s[28:29], s[0:1], 96")
e("s_memrealtime s[86:87]")
e("v_and_b32 v1, 63, v0")
e("v_lshrrev_b32 v5, 6, v0")
g.nop(1)
e("v_readfirstlane_b32 s70, v5")
e("s_and_b32 s68, s2, 7")
e("s_lshl_b32 s68, s68, 2")
e("s_lshr_b32 s69, s2, 3")
e("s_and_b32 s69, s69, 3")
e("s_add_u32 s68, s68, s69")
e("s_lshr_b32 s69, s2, 5")
e("v_and_b32 v6, 7, v1")
e("v_mul_u32_u24 v2, 384, v6")
e("v_lshrrev_b32 v6, 3, v1")
e("v_lshlrev_b32 v6, 4, v6")
e("v_add_u32 v2, v2, v6")
e("v_lshrrev_b32 v7, 5, v1")
e("v_and_b32 v8, 31, v1")
e("v_mul_u32_u24 v3, 384, v7")
e("v_mul_u32_u24 v6, 12, v8")
e("v_add_u32 v3, v3, v6")
e("s_waitcnt lgkmcnt(0)")
def srd(base, ptr, nbytes):
    e(f"s_mov_b32 s{base}, s{ptr}")
    e(f"s_and_b32 s{base+1}, s{ptr+1}, 0xffff")
    e(f"s_mov_b32 s{base+2}, {nbytes}")
    e(f"s_mov_b32 s{base+3}, 0x00020000")
srd(56, 4, 1280)
srd(32, 6, 100663296)
srd(36, 8, 100663296)
srd(40, 10, 7864320)
srd(44, 12, 7864320)
srd(48, 16, 1966080)
srd(60, 18, 3072)
srd(52, 20, 1966080)
srd(64, 22, 1280)
for b in range(8):
    e(f"s_mov_b32 s{4+2*b}, {hex((0xff << (8*b)) & 0xffffffff) if b < 4 else 0}")
    e(f"s_mov_b32 s{5+2*b}, {hex((0xff << (8*(b-4))) & 0xffffffff) if b >= 4 else 0}")
e("s_mov_b32 s20, 0xff00ff00")
e("s_mov_b32 s21, 0xff00ff00")
e("s_mul_i32 s73, s68, 3145728")
e("s_mul_i32 s74, s69, 393216")
e("s_add_u32 s73, s73, s74")
e("s_mul_i32 s74, s70, 49152")
e("s_add_u32 s73, s73, s74")
e("s_or_b32 s86, s86, 1")
e("v_lshrrev_b32 v6, 5, v1")
e("s_lshl_b32 s72, s70, 1")
e("v_add_u32 v6, s72, v6")
e("v_mul_u32_u24 v6, 768, v6")
e("v_mul_u32_u24 v9, 24, v8")
e("v_add_u32 v13, v6, v9")
NSLOT = 48
STREAM = []
for t_ in range(2):
    STREAM += [("K", t_, i) for i in range(24)]
    STREAM += [("V", t_, i) for i in range(32)]
POS = {x: n for n, x in enumerate(STREAM)}
def slot_reg(kind, tile, idx):
    return 64 + 4 * (POS[(kind, tile, idx)] % NSLOT)
issued = [0]
def issue(n):
    for _ in range(n):
        if issued[0] >= len(STREAM):
            return
        kind, tile, i = STREAM[issued[0]]
        r = 64 + 4 * (issued[0] % NSLOT)
        issued[0] += 1
        if kind == "K":
            b, j = divmod(i, 3)
            e(f"s_add_u32 s72, s73, {tile*24576 + b*3072}")
            g.vmem(f"buffer_load_dwordx4 v[{r}:{r+3}], v2, s[32:35], s72 offen offset:{128*j}{ntf}", f"K{tile}_{i}")
        else:
            e(f"s_add_u32 s72, s73, {tile*24576 + i*768}")
            g.vmem(f"buffer_load_dwordx3 v[{r}:{r+2}], v3, s[36:39], s72 offen{ntf}", f"V{tile}_{i}")
def x_loads():
    e("v_lshlrev_b32 v5, 2, v1")
    for r in range(5):
        g.vmem(f"buffer_load_dword v{47+r}, v5, s[56:59], 0 offen offset:{256*r}", "x")
def x_unpack():
    for r in range(5):
        e(f"v_lshlrev_b32 v{52+2*r}, 16, v{47+r}")
        e(f"v_and_b32 v{53+2*r}, 0xffff0000, v{47+r}")
def layernorm(lds_off):
    e("v_add_f32 v43, v52, v53")
    for k in range(54, 62):
        e(f"v_add_f32 v43, v43, v{k}")
    reduce_to_sgpr("v_add_f32", 43, 74)
    e(f"v_mov_b32 v62, {INV640}")
    e("v_mul_f32 v62, s74, v62")
    e("v_sub_f32 v63, v52, v62")
    e("v_mul_f32 v43, v63, v63")
    for k in range(53, 62):
        e(f"v_sub_f32 v63, v{k}, v62")
        e("v_fma_f32 v43, v63, v63, v43")
    reduce_to_sgpr("v_add_f32", 43, 74)
    e(f"v_mov_b32 v63, {INV640}")
    e("v_mul_f32 v63, s74, v63")
    rnd(62, 62)
    rnd(63, 63)
    e(f"v_add_f32 v63, {EPS}, v63")
    rnd(63, 63)
    e("v_sqrt_f32 v63, v63")
    g.nop(1)
    rnd(63, 63)
    e("v_rcp_f32 v63, v63")
    g.nop(1)
    for k in range(52, 62):
        e(f"v_sub_f32 v{k}, v{k}, v62")
        rnd(k, k)
        e(f"v_mul_f32 v{k}, v{k}, v63")
        rnd(k, k)
    if lds_off is not None:
        e("v_lshlrev_b32 v5, 3, v1")
        for r in range(5):
            e(f"ds_write_b64 v5, v[{52+2*r}:{53+2*r}] offset:{lds_off + 512*r}")

if "streamonly" not in OPTS:
    e("s_cmp_eq_u32 s70, 0")
    e("s_cbranch_scc1 L_wave_q")
    e("s_cmp_eq_u32 s70, 1")
    e("s_cbranch_scc1 L_wave_h")
g.vm = []
e("s_barrier")
issued[0] = 0
issue(NSLOT)
common_vm = list(g.vm)
if "nobar" not in OPTS:
    e("s_barrier")
e("s_branch L_join")

g.lab("L_wave_q")
if "noprio" not in OPTS:
    e("s_setprio 3")
g.vm = []
x_loads()
e("s_mul_i32 s71, s69, 80")
e("v_add_u32 v4, s71, v7")
e("v_mov_b32 v9, 12288")
e("v_mul_lo_u32 v4, v4, v9")
e("v_mul_u32_u24 v6, 12, v8")
e("v_add_u32 v4, v4, v6")
e("s_mul_i32 s72, s68, 384")
e("v_add_u32 v4, s72, v4")
e("s_mov_b32 s72, 0")
for i in range(40):
    r = 64 + 4 * i
    g.vmem(f"buffer_load_dwordx3 v[{r}:{r+2}], v4, s[40:43], s72 offen", f"wq{i//10}")
    if i != 39:
        e("s_add_u32 s72, s72, 24576")
e("s_lshl_b32 s72, s68, 3")
e("v_mov_b32 v9, s72")
e("v_mov_b32 v10, s86")
e("v_mov_b32 v11, 0")
set_exec("1", "0")
g.vmem("global_atomic_cmpswap v12, v9, v[10:11], s[26:27] sc0 sc1", "nonce")
full_exec()
e("s_barrier")
stamp(5, True)
g.wait_tag("x")
stamp(6, True)
x_unpack()
layernorm(XN_OFF)
e("s_waitcnt lgkmcnt(0)")
stamp(1)
for k in range(56, 62):
    e(f"v_mov_b32 v{k}, 0")
e("v_lshrrev_b32 v5, 5, v1")
e("v_add_u32 v5, s71, v5")
e("v_lshlrev_b32 v5, 2, v5")
for i in range(40):
    e(f"ds_read_b32 v{64+4*i+3}, v5 offset:{XN_OFF + 8*i}")
e("s_waitcnt lgkmcnt(0)")
for i in range(40):
    if i % 10 == 0:
        g.wait_tag(f"wq{i//10}")
    r = 64 + 4 * i
    e(f"v_lshrrev_b32 v14, 16, v{r+3}")
    for d in range(3):
        e(f"v_dot2_f32_bf16 v{56+2*d}, v{r+d}, v14, v{56+2*d}")
        e(f"v_dot2_f32_bf16 v{57+2*d}, v{r+d}, v{r+3}, v{57+2*d}")
g.nop(3)
e(f"ds_write_b64 v13, v[56:57] offset:{QPART_OFF}")
e(f"ds_write_b64 v13, v[58:59] offset:{QPART_OFF+8}")
e(f"ds_write_b64 v13, v[60:61] offset:{QPART_OFF+16}")
e("v_mul_u32_u24 v5, 12, v1")
e("s_waitcnt lgkmcnt(0)")
for d in range(3):
    e(f"ds_read_b32 v{16+d}, v5 offset:{QPART_OFF + 4*d}")
    e(f"ds_read_b32 v{20+d}, v5 offset:{QPART_OFF + 768 + 4*d}")
g.wait_tag("nonce")
e("v_readfirstlane_b32 s87, v12")
g.nop(3)
e("s_cmp_eq_u32 s87, 0")
e("s_cselect_b32 s86, s86, s87")
e("s_waitcnt lgkmcnt(0)")
for d in range(3):
    e(f"v_add_f32 v{16+d}, v{16+d}, v{20+d}")
e("v_mov_b32 v19, s86")
e("s_lshl_b32 s72, s68, 3")
e("s_add_u32 s72, s72, s69")
e("s_lshl_b32 s72, s72, 10")
e("v_lshlrev_b32 v9, 4, v1")
e("v_add_u32 v5, s72, v9")
e(f"global_store_dwordx4 v5, v[16:19], s[28:29] offset:{WS_Q} sc1")
e("v_mov_b32 v5, 0")
e("v_mov_b32 v6, s86")
e(f"ds_write_b32 v5, v6 offset:{NONCE_OFF}")
stamp(2)
e("s_lshl_b32 s72, s68, 13")
e("v_add_u32 v9, s72, v9")
e("s_mov_b32 s74, 0")
g.lab("L_qg")
for cc in range(8):
    if cc == 4:
        e("v_add_u32 v10, 4096, v9")
    a_ = "v9" if cc < 4 else "v10"
    e(f"global_load_dwordx4 v[{64+4*cc}:{67+4*cc}], {a_}, s[28:29] offset:{WS_Q + 1024*(cc%4)} sc1")
e("s_waitcnt vmcnt(0)")
e("v_cmp_ne_u32 vcc, s86, v67")
for cc in range(1, 8):
    e(f"v_cmp_ne_u32 s[78:79], s86, v{67+4*cc}")
    g.nop(1)
    e("s_or_b64 vcc, vcc, s[78:79]")
e("s_add_u32 s74, s74, 1")
g.nop(4)
e("s_cbranch_vccz L_qg_done")
e("s_cmp_ge_u32 s74, 0x40000")
e("s_cbranch_scc1 L_qg_done")
e("s_branch L_qg")
g.lab("L_qg_done")
for d in range(3):
    for st in (4, 2, 1):
        for k in range(st):
            e(f"v_add_f32 v{64+4*k+d}, v{64+4*k+d}, v{64+4*(k+st)+d}")
e("v_cvt_pk_bf16_f32 v64, v64, v64")
e("v_cvt_pk_bf16_f32 v65, v65, v65")
e("v_cvt_pk_bf16_f32 v66, v66, v66")
e("v_mul_u32_u24 v5, 6, v1")
e(f"ds_write_b16 v5, v64 offset:{QBF_OFF}")
e(f"ds_write_b16 v5, v65 offset:{QBF_OFF+2}")
e(f"ds_write_b16 v5, v66 offset:{QBF_OFF+4}")
e("s_waitcnt lgkmcnt(0)")
e("s_branch L_late_stream")

g.lab("L_wave_h")
g.vm = []
x_loads()
e("v_mul_u32_u24 v6, 3072, v1")
e("s_mul_i32 s72, s2, 12")
e("v_add_u32 v6, s72, v6")
e("s_mov_b32 s72, 0")
for r in range(10):
    g.vmem(f"buffer_load_dwordx3 v[{64+4*r}:{66+4*r}], v6, s[48:51], s72 offen", "w1")
    if r != 9:
        e(f"s_add_u32 s72, s72, {64*3072}")
e("s_mul_i32 s72, s2, 6")
e("v_add_u32 v6, s72, v1")
e("v_lshlrev_b32 v6, 1, v6")
g.vmem("buffer_load_ushort v15, v6, s[60:63], 0 offen", "b1")
e("s_barrier")
g.wait_tag("x")
x_unpack()
layernorm(None)
layernorm(Y_OFF)
e("s_waitcnt lgkmcnt(0)")
e("v_lshlrev_b32 v5, 2, v1")
for r in range(10):
    e(f"ds_read_b32 v{64+4*r+3}, v5 offset:{Y_OFF + 256*r}")
for k in range(16, 22):
    e(f"v_mov_b32 v{k}, 0")
g.wait_tag("b1")
e("s_waitcnt lgkmcnt(0)")
for r in range(10):
    rr = 64 + 4 * r
    e(f"v_lshrrev_b32 v14, 16, v{rr+3}")
    for d in range(3):
        e(f"v_dot2_f32_bf16 v{16+2*d}, v{rr+d}, v14, v{16+2*d}")
        e(f"v_dot2_f32_bf16 v{17+2*d}, v{rr+d}, v{rr+3}, v{17+2*d}")
g.nop(4)
dpp_reduce("v_add_f32", list(range(16, 22)))
e("v_mov_b32 v5, 0")
set_exec("0", "0x80000000")
e(f"ds_write_b64 v5, v[16:17] offset:{HPART_OFF}")
e(f"ds_write_b64 v5, v[18:19] offset:{HPART_OFF+8}")
e(f"ds_write_b64 v5, v[20:21] offset:{HPART_OFF+16}")
set_exec("0x3f", "0")
e("v_lshlrev_b32 v5, 2, v1")
e("s_waitcnt lgkmcnt(0)")
e(f"ds_read_b32 v40, v5 offset:{HPART_OFF}")
e("s_waitcnt lgkmcnt(0)")
rnd(40, 40)
e("v_lshlrev_b32 v41, 16, v15")
e("v_add_f32 v40, v40, v41")
rnd(40, 40)
e("v_mul_f32 v41, v40, v40")
e(f"v_mov_b32 v42, {f32(0.044715)}")
e("v_fma_f32 v41, v41, v42, 1.0")
e("v_mul_f32 v41, v41, v40")
e(f"v_mul_f32 v41, {f32(2.0 * math.sqrt(2.0 / math.pi) * 1.4426950408889634)}, v41")
e("v_exp_f32 v41, v41")
g.nop(1)
e("v_add_f32 v41, 1.0, v41")
e("v_rcp_f32 v41, v41")
g.nop(1)
e("v_fma_f32 v40, -v40, v41, v40")
rnd(40, 40)
e(f"ds_write_b32 v5, v40 offset:{H_OFF}")
full_exec()
e("s_waitcnt vmcnt(0) lgkmcnt(0)")
g.lab("L_late_stream")
e("s_barrier")
e("s_setprio 0")
g.vm = []
issued[0] = 0
issue(NSLOT)
assert g.vm == common_vm
g.lab("L_join")
stamp(3)
e("v_mov_b32 v5, 0")
e(f"ds_read_b32 v6, v5 offset:{NONCE_OFF}")
e("v_lshrrev_b32 v5, 4, v1")
e("v_lshlrev_b32 v5, 1, v5")
e("v_and_b32 v7, 1, v1")
e("v_add_u32 v5, v5, v7")
e("v_lshlrev_b32 v5, 4, v5")
for j in range(3):
    e(f"ds_read_b128 v[{16+4*j}:{19+4*j}], v5 offset:{QBF_OFF + 128*j}")
e("v_lshrrev_b32 v5, 5, v1")
e("v_lshlrev_b32 v5, 2, v5")
for k in range(56, 62):
    e(f"v_mov_b32 v{k}, 0")
e("s_waitcnt lgkmcnt(0)")
e("v_readfirstlane_b32 s86, v6")
g.nop(3)

def qk(tile):
    for half in range(2):
        for bb in range(4):
            b = 4 * half + bb
            g.wait_tag(f"K{tile}_{3*b+2}")
            for j in range(3):
                r = slot_reg("K", tile, 3 * b + j)
                c = "0" if j == 0 else f"v[{40+4*bb}:{43+4*bb}]"
                e(f"v_mfma_f32_16x16x32_bf16 v[{40+4*bb}:{43+4*bb}], v[{16+4*j}:{19+4*j}], v[{r}:{r+3}], {c}")
            issue(3)
        g.nop(10)
        for bb in range(4):
            e(f"v_cndmask_b32 v{40+4*bb}, v{40+4*bb}, v{41+4*bb}, s[20:21]")
        g.nop(1)
        for bb in range(4):
            e(f"v_add_f32_dpp v{41+4*bb}, v{40+4*bb}, v{40+4*bb} row_ror:8 row_mask:0xf bank_mask:0xf")
        for bb in range(4):
            b = 4 * half + bb
            if b == 0:
                e("v_mov_b32 v62, v41")
            else:
                e(f"v_cndmask_b32 v62, v62, v{41+4*bb}, s[{4+2*b}:{5+2*b}]")
    rnd(62, 62)
    e(f"v_mul_f32 v62, {SCALE}, v62")
    rnd(62, 62)
    e("v_mov_b32 v63, v62")
    reduce_to_sgpr("v_max_f32", 63, 76)
def softmax(tile):
    if tile == 0:
        e("s_mov_b32 s77, s76")
        e("v_subrev_f32 v62, s77, v62")
        e(f"v_mul_f32 v62, {LOG2E}, v62")
        e("v_exp_f32 v62, v62")
        g.nop(1)
        e("v_mov_b32 v12, v62")
    else:
        e("v_mov_b32 v6, s76")
        e("v_max_f32 v6, s77, v6")
        g.nop(1)
        e("v_readfirstlane_b32 s78, v6")
        e("v_sub_f32 v6, s77, v6")
        e(f"v_mul_f32 v6, {LOG2E}, v6")
        e("v_exp_f32 v6, v6")
        e("s_mov_b32 s77, s78")
        g.nop(2)
        e("v_subrev_f32 v62, s77, v62")
        e(f"v_mul_f32 v62, {LOG2E}, v62")
        e("v_exp_f32 v62, v62")
        for k in range(56, 62):
            e(f"v_mul_f32 v{k}, v{k}, v6")
        e("v_fma_f32 v12, v12, v6, v62")
    rnd(62, 62)
def pv(tile):
    for i in range(32):
        e(f"ds_bpermute_b32 v{slot_reg('V', tile, i)+3}, v5, v62 offset:{8*i}")
        if i % 8 == 7:
            e("s_waitcnt lgkmcnt(0)")
    for i in range(32):
        r = slot_reg("V", tile, i)
        if i % 2 == 0:
            g.wait_tag(f"V{tile}_{i+1}")
        e(f"v_lshrrev_b32 v14, 16, v{r+3}")
        for d in range(3):
            e(f"v_dot2_f32_bf16 v{56+2*d}, v{r+d}, v14, v{56+2*d}")
            e(f"v_dot2_f32_bf16 v{57+2*d}, v{r+d}, v{r+3}, v{57+2*d}")
        if i % 2 == 1:
            issue(2)

qk(0)
stamp(4)
softmax(0)
pv(0)
stamp(5)
qk(1)
stamp(6)
e("v_mov_b32 v7, 52429")
e("v_mul_u32_u24 v7, v0, v7")
e("v_lshrrev_b32 v7, 22, v7")
e("v_mul_u32_u24 v8, 80, v7")
e("v_sub_u32 v8, v0, v8")
e("v_lshlrev_b32 v9, 2, v7")
e("s_mul_i32 s72, s68, 192")
e("s_mul_i32 s74, s69, 24")
e("s_add_u32 s72, s72, s74")
e("v_add_u32 v9, s72, v9")
e("v_mul_u32_u24 v9, 1280, v9")
e("v_lshlrev_b32 v10, 4, v8")
e("v_add_u32 v9, v9, v10")
for i in range(4):
    g.vmem(f"buffer_load_dwordx4 v[{144+4*i}:{147+4*i}], v9, s[44:47], 0 offen offset:{1280*i}", "wo")
e("s_mul_i32 s72, s2, 6")
e("v_add_u32 v9, s72, v7")
e("v_mul_u32_u24 v9, 1280, v9")
e("v_add_u32 v9, v9, v10")
g.vmem("buffer_load_dwordx4 v[140:143], v9, s[52:55], 0 offen", "w2")
e("v_mov_b32 v138, v7")
e("v_mov_b32 v139, v8")
e("v_and_b32 v9, 7, v0")
e("v_lshlrev_b32 v9, 2, v9")
e("v_lshrrev_b32 v10, 3, v0")
e("v_and_b32 v10, 3, v10")
e("v_add_u32 v9, v9, v10")
e("v_lshlrev_b32 v9, 3, v9")
e("v_mov_b32 v135, v9")
g.vmem("global_load_dword v137, v9, s[26:27] sc1", "nonces")
softmax(1)
pv(1)
stamp(7)
if "streamonly" in OPTS:
    e("s_branch L_fin")

reduce_to_sgpr("v_add_f32", 12, 79)
e(f"ds_write_b64 v13, v[56:57] offset:{QPART_OFF}")
e(f"ds_write_b64 v13, v[58:59] offset:{QPART_OFF+8}")
e(f"ds_write_b64 v13, v[60:61] offset:{QPART_OFF+16}")
e("v_mov_b32 v6, s77")
e("v_mov_b32 v7, s79")
e("s_lshl_b32 s72, s70, 3")
e("v_mov_b32 v5, s72")
set_exec("1", "0")
e(f"ds_write_b64 v5, v[6:7] offset:{ML_OFF}")
full_exec()
e("s_waitcnt lgkmcnt(0)")
e("s_barrier")
e("s_cmp_ge_u32 s70, 3")
e("s_cbranch_scc1 L_comb_done")
e("v_mov_b32 v5, 0")
for w in range(8):
    e(f"ds_read_b64 v[{40+2*w}:{41+2*w}], v5 offset:{ML_OFF + 8*w}")
e("v_lshlrev_b32 v5, 2, v0")
for k in range(16):
    e(f"ds_read_b32 v{64+k}, v5 offset:{QPART_OFF + 768*k}")
e("s_waitcnt lgkmcnt(0)")
e("v_max_f32 v6, v40, v42")
for w in range(2, 8):
    e(f"v_max_f32 v6, v6, v{40+2*w}")
for w in range(8):
    e(f"v_sub_f32 v{40+2*w}, v{40+2*w}, v6")
    e(f"v_mul_f32 v{40+2*w}, {LOG2E}, v{40+2*w}")
    e(f"v_exp_f32 v{40+2*w}, v{40+2*w}")
g.nop(1)
e("v_mul_f32 v7, v40, v41")
for w in range(1, 8):
    e(f"v_fma_f32 v7, v{40+2*w}, v{41+2*w}, v7")
for w in range(8):
    e(f"v_add_f32 v{64+2*w}, v{64+2*w}, v{65+2*w}")
e("v_mul_f32 v8, v40, v64")
for w in range(1, 8):
    e(f"v_fma_f32 v8, v{40+2*w}, v{64+2*w}, v8")
e(f"ds_write_b32 v5, v8 offset:{OSUM_OFF}")
e("s_cmp_lg_u32 s70, 0")
e("s_cbranch_scc1 L_comb_done")
set_exec("1", "0")
e(f"ds_write_b64 v5, v[6:7] offset:{OSUM_OFF+768}")
full_exec()
g.lab("L_comb_done")
e("s_waitcnt lgkmcnt(0)")
e("s_barrier")
e("s_lshl_b32 s72, s68, 3")
e("s_add_u32 s72, s72, s69")
e("s_lshl_b32 s72, s72, 11")
e(f"s_add_u32 s72, s72, {WS_O}")
e("s_cmp_gt_u32 s70, 1")
e("s_cbranch_scc1 L_opub_done")
e("v_mul_u32_u24 v5, 12, v0")
e(f"ds_read_b32 v40, v5 offset:{OSUM_OFF}")
e(f"ds_read_b32 v41, v5 offset:{OSUM_OFF+4}")
e(f"ds_read_b32 v42, v5 offset:{OSUM_OFF+8}")
e("v_mov_b32 v43, s86")
e("v_lshlrev_b32 v6, 4, v0")
e("v_add_u32 v6, s72, v6")
e("s_cmp_eq_u32 s70, 0")
e("s_cbranch_scc1 L_opub_st")
set_exec("1", "0")
g.lab("L_opub_st")
e("s_waitcnt lgkmcnt(0)")
e("global_store_dwordx4 v6, v[40:43], s[28:29] sc1")
full_exec()
g.lab("L_opub_done")
e("s_cmp_gt_u32 s70, 1")
e("s_cbranch_scc1 L_og_done")
e("s_lshl_b32 s72, s68, 14")
e(f"s_add_u32 s72, s72, {WS_O}")
e("s_cmp_eq_u32 s70, 1")
e("s_cbranch_scc1 L_og_ml")
e("v_lshrrev_b32 v6, 3, v1")
e("v_lshlrev_b32 v9, 11, v6")
e("v_and_b32 v7, 7, v1")
e("s_lshl_b32 s74, s69, 3")
e("v_add_u32 v8, s74, v7")
e("v_lshlrev_b32 v8, 4, v8")
e("v_add_u32 v9, v9, v8")
e("v_add_u32 v9, s72, v9")
poll_granule(40, 9, 0, "s86")
e("v_mul_u32_u24 v5, 96, v6")
e("v_mul_u32_u24 v7, 12, v7")
e("v_add_u32 v5, v5, v7")
e(f"ds_write_b32 v5, v40 offset:{OG_OFF}")
e(f"ds_write_b32 v5, v41 offset:{OG_OFF+4}")
e(f"ds_write_b32 v5, v42 offset:{OG_OFF+8}")
e("s_branch L_og_done")
g.lab("L_og_ml")
set_exec("0xff", "0")
e("v_lshlrev_b32 v9, 11, v1")
e("v_add_u32 v9, s72, v9")
poll_granule(40, 9, 1024, "s86")
e("v_lshlrev_b32 v5, 3, v1")
e(f"ds_write_b64 v5, v[40:41] offset:{OG_OFF+768}")
full_exec()
g.lab("L_og_done")
e("s_waitcnt lgkmcnt(0)")
e("s_barrier")
e("s_cmp_lg_u32 s70, 0")
e("s_cbranch_scc1 L_ofin_done")
set_exec("0xffffff", "0")
e("v_mov_b32 v5, 0")
for w in range(8):
    e(f"ds_read_b64 v[{40+2*w}:{41+2*w}], v5 offset:{OG_OFF + 768 + 8*w}")
e("v_lshlrev_b32 v5, 2, v1")
for w in range(8):
    e(f"ds_read_b32 v{64+w}, v5 offset:{OG_OFF + 96*w}")
e("s_waitcnt lgkmcnt(0)")
e("v_max_f32 v6, v40, v42")
for w in range(2, 8):
    e(f"v_max_f32 v6, v6, v{40+2*w}")
for w in range(8):
    e(f"v_sub_f32 v{40+2*w}, v{40+2*w}, v6")
    e(f"v_mul_f32 v{40+2*w}, {LOG2E}, v{40+2*w}")
    e(f"v_exp_f32 v{40+2*w}, v{40+2*w}")
g.nop(1)
e("v_mul_f32 v7, v40, v41")
for w in range(1, 8):
    e(f"v_fma_f32 v7, v{40+2*w}, v{41+2*w}, v7")
e("v_mul_f32 v8, v40, v64")
for w in range(1, 8):
    e(f"v_fma_f32 v8, v{40+2*w}, v{64+w}, v8")
e("v_rcp_f32 v7, v7")
g.nop(1)
e("v_mul_f32 v8, v8, v7")
rnd(8, 8)
e(f"ds_write_b32 v5, v8 offset:{OFIN_OFF}")
full_exec()
e("s_waitcnt lgkmcnt(0)")
g.lab("L_ofin_done")
e("s_barrier")
stamp(8)
e("v_lshlrev_b32 v5, 4, v138")
e(f"ds_read_b128 v[6:9], v5 offset:{OFIN_OFF}")
e("v_lshlrev_b32 v5, 2, v138")
e(f"ds_read_b32 v10, v5 offset:{H_OFF}")
for k in range(40, 56):
    e(f"v_mov_b32 v{k}, 0")
e("s_waitcnt vmcnt(0) lgkmcnt(0)")
for i in range(4):
    e(f"v_lshrrev_b32 v14, 16, v{6+i}")
    for d in range(4):
        e(f"v_dot2_f32_bf16 v{40+2*d}, v{144+4*i+d}, v14, v{40+2*d}")
        e(f"v_dot2_f32_bf16 v{41+2*d}, v{144+4*i+d}, v{6+i}, v{41+2*d}")
e("v_lshrrev_b32 v14, 16, v10")
for d in range(4):
    e(f"v_dot2_f32_bf16 v{48+2*d}, v{140+d}, v14, v{48+2*d}")
    e(f"v_dot2_f32_bf16 v{49+2*d}, v{140+d}, v10, v{49+2*d}")
e("v_mul_u32_u24 v5, 2560, v138")
e("v_lshlrev_b32 v6, 5, v139")
e("v_add_u32 v5, v5, v6")
e("v_cmp_gt_u32 vcc, 480, v0")
e("s_and_saveexec_b64 s[78:79], vcc")
g.nop(2)
e(f"ds_write_b128 v5, v[40:43] offset:{S2_OFF}")
e(f"ds_write_b128 v5, v[44:47] offset:{S2_OFF+16}")
e(f"ds_write_b128 v5, v[48:51] offset:{S2_OFF+15360}")
e(f"ds_write_b128 v5, v[52:55] offset:{S2_OFF+15360+16}")
full_exec()
e("s_waitcnt lgkmcnt(0)")
e("s_barrier")
e("v_cmp_le_u32 vcc, 214, v0")
e("v_subrev_u32 v6, 214, v0")
g.nop(1)
e("v_cndmask_b32 v6, v0, v6, vcc")
e("v_cndmask_b32 v7, 0, 1, vcc")
e("v_mul_u32_u24 v5, 15360, v7")
e("v_mul_u32_u24 v8, 12, v6")
e("v_add_u32 v5, v5, v8")
e("v_cmp_gt_u32 vcc, 428, v0")
e("s_and_saveexec_b64 s[78:79], vcc")
e("s_cbranch_execz L_s2_done")
for rg in range(6):
    for k in range(3):
        e(f"ds_read_b32 v{40+4*rg+k}, v5 offset:{S2_OFF + 2560*rg + 4*k}")
e("s_waitcnt lgkmcnt(0)")
for rg in range(1, 6):
    for k in range(3):
        e(f"v_add_f32 v{40+k}, v{40+k}, v{40+4*rg+k}")
e("v_mov_b32 v43, s86")
e("v_mul_u32_u24 v9, 3424, v7")
e("v_lshlrev_b32 v8, 4, v6")
e("v_add_u32 v9, v9, v8")
e("s_lshl_b32 s72, s2, 13")
e(f"s_add_u32 s72, s72, {WS_S}")
e("v_add_u32 v9, s72, v9")
e("global_store_dwordx4 v9, v[40:43], s[28:29] sc1")
g.lab("L_s2_done")
full_exec()
e("s_cmp_ge_u32 s2, 214")
e("s_cbranch_scc1 L_fin")
e("v_lshrrev_b32 v7, 8, v0")
e("v_and_b32 v6, 255, v0")
e("v_lshlrev_b32 v6, 13, v6")
e("v_mul_u32_u24 v9, 3424, v7")
e("v_add_u32 v9, v9, v6")
e("s_lshl_b32 s72, s2, 4")
e(f"s_add_u32 s72, s72, {WS_S}")
e("v_add_u32 v9, s72, v9")
e("s_mul_i32 s72, s2, 3")
e("v_add_u32 v5, s72, v1")
e("v_lshlrev_b32 v5, 1, v5")
e("buffer_load_ushort v44, v5, s[56:59], 0 offen")
e("buffer_load_ushort v45, v5, s[64:67], 0 offen")
e("s_mov_b32 s74, 0")
g.lab("L_fpoll")
e("global_load_dwordx4 v[40:43], v9, s[28:29] sc1")
e("s_waitcnt vmcnt(0)")
e("v_cmp_ne_u32 vcc, v137, v43")
e("v_cmp_eq_u32 s[78:79], 0, v137")
e("s_add_u32 s74, s74, 1")
g.nop(4)
e("s_or_b64 vcc, vcc, s[78:79]")
g.nop(4)
e("s_cbranch_vccz L_fpoll_done")
e("s_cmp_ge_u32 s74, 0x40000")
e("s_cbranch_scc1 L_fpoll_done")
e("s_sleep 1")
e("global_load_dword v137, v135, s[26:27] sc1")
e("s_branch L_fpoll")
g.lab("L_fpoll_done")
stamp(9)
dpp_reduce("v_add_f32", [40, 41, 42])
e("s_lshl_b32 s72, s70, 4")
e("v_mov_b32 v6, s72")
set_exec("0", "0x80000000")
e(f"ds_write_b128 v6, v[40:43] offset:{RED_OFF}")
full_exec()
e("s_waitcnt lgkmcnt(0)")
e("s_barrier")
e("s_cmp_lg_u32 s70, 0")
e("s_cbranch_scc1 L_fin")
set_exec("0x7", "0")
e("v_lshlrev_b32 v6, 2, v1")
for w in range(8):
    e(f"ds_read_b32 v{48+w}, v6 offset:{RED_OFF + 16*w}")
e("s_waitcnt lgkmcnt(0)")
e("v_add_f32 v48, v48, v49")
e("v_add_f32 v50, v50, v51")
e("v_add_f32 v48, v48, v50")
e("v_add_f32 v52, v52, v53")
e("v_add_f32 v54, v54, v55")
e("v_add_f32 v52, v52, v54")
rnd(48, 48)
rnd(52, 52)
e("v_lshlrev_b32 v45, 16, v45")
e("v_add_f32 v52, v52, v45")
rnd(52, 52)
e(f"v_mul_f32 v53, {f32(-1.4426950408889634)}, v52")
e("v_exp_f32 v53, v53")
g.nop(1)
e("v_add_f32 v53, 1.0, v53")
e("v_rcp_f32 v53, v53")
g.nop(1)
e("v_mul_f32 v52, v52, v53")
rnd(52, 52)
e("v_mul_f32 v48, v48, v52")
rnd(48, 48)
e("v_lshlrev_b32 v44, 16, v44")
e("v_add_f32 v48, v44, v48")
e("v_cvt_pk_bf16_f32 v48, v48, v48")
e("v_cmp_gt_u32 vcc, 1280, v5")
e("s_and_saveexec_b64 s[78:79], vcc")
e("s_cbranch_execz L_nostore")
e("global_store_short v5, v48, s[24:25]")
g.lab("L_nostore")
full_exec()
g.lab("L_fin")
if STAMPS:
    stamp(10)
    e("s_lshl_b32 s72, s2, 3")
    e("s_add_u32 s72, s72, s70")
    e("s_lshl_b32 s72, s72, 6")
    e(f"s_add_u32 s72, s72, {WS_STAMP}")
    e("v_mov_b32 v5, s72")
    set_exec("1", "0")
    for i in range(11):
        e(f"v_mov_b32 v6, s{88+i}")
        e(f"global_store_dword v5, v6, s[28:29] offset:{4*i}")
        e("s_waitcnt vmcnt(0)")
    full_exec()
g.lab("L_end")
e("s_endpgm")

hdr = open(f"cdna_kernels/{NAME}.s.ref").read().split("; Override launch")[0]
txt = hdr + f"""; Override launch geometry by editing the next line (default: block=256,
; grid=ceil(out_elems/256), lds=0). Harness parses it; keep it on one line.
; @launch grid=(256,1,1) block=(512,1,1) lds={LDS_BYTES}
.amdgcn_target "amdgcn-amd-amdhsa--gfx950"
.text
.globl {NAME}_kernel
.p2align 8
.type {NAME}_kernel,@function
{NAME}_kernel:
""" + "\n".join(g.L) + f"""
.section .rodata,"a"
.p2align 6
.amdhsa_kernel {NAME}_kernel
  .amdhsa_next_free_vgpr 256
  .amdhsa_next_free_sgpr 102
  .amdhsa_accum_offset 256
  .amdhsa_group_segment_fixed_size 0
  .amdhsa_kernarg_size 104
  .amdhsa_user_sgpr_count 2
  .amdhsa_user_sgpr_kernarg_segment_ptr 1
  .amdhsa_system_sgpr_workgroup_id_x 1
.end_amdhsa_kernel
"""
open(OUT, "w").write(txt)
print("wrote", OUT, len(g.L), "lines")
```

```python
import struct, sys, math

NAME = "recurrent_scan__gqa_block_cached__mixer_channel_mlp__decode"
OUT = sys.argv[1] if len(sys.argv) > 1 else f"cdna_kernels/{NAME}.s"
OPTS = set(sys.argv[2:])
NT = "nont" not in OPTS
STAMPS = "stamps" in OPTS

def f32(x):
    return "0x%08x" % struct.unpack("<I", struct.pack("<f", x))[0]

LOG2E = f32(1.4426950408889634)
SCALE = f32(192 ** -0.5)
INV640 = f32(1.0 / 640.0)
EPS = f32(1e-5)

XN_OFF = 0
Y_OFF = 2560
QPART_OFF = 5120
HPART_OFF = 17408
QBF_OFF = 17664
H_OFF = 18048
ML_OFF = 18080
OFIN_OFF = 18144
RED_OFF = 18240
NONCE_OFF = 18400
OSUM_OFF = 18432
OG_OFF = 19456
S2_OFF = 20480
LBUF_OFF = 20480
NLDS = 0
for o in OPTS:
    if o.startswith("lds"):
        NLDS = int(o[3:])
LDS_BYTES = max(S2_OFF + 2 * 6 * 2560 + 64, LBUF_OFF + 8 * NLDS * 1024)
WS_Q = 0
WS_O = 0x40000
WS_S = 0x100000
WS_STAMP = 0x400000

class G:
    def __init__(s):
        s.L = []
        s.vm = []
    def e(s, t):
        s.L.append("    " + t)
    def lab(s, t):
        s.L.append(t + ":")
    def vmem(s, t, tag):
        s.e(t)
        s.vm.append(tag)
    def wait_tag(s, tag):
        idx = max(i for i, t in enumerate(s.vm) if t == tag)
        n = min(len(s.vm) - 1 - idx, 63)
        s.e(f"s_waitcnt vmcnt({n})")
    def nop(s, n):
        while n > 0:
            k = min(n, 16)
            s.e(f"s_nop {k-1}")
            n -= k

g = G()
e = g.e

def rnd(dst, src):
    e(f"v_cvt_pk_bf16_f32 v{dst}, v{src}, v{src}")
    e(f"v_and_b32 v{dst}, 0xffff0000, v{dst}")

def dpp_reduce(op, regs):
    steps = ["row_shr:1 row_mask:0xf bank_mask:0xf", "row_shr:2 row_mask:0xf bank_mask:0xf",
             "row_shr:4 row_mask:0xf bank_mask:0xf", "row_shr:8 row_mask:0xf bank_mask:0xf",
             "row_bcast:15 row_mask:0xa bank_mask:0xf", "row_bcast:31 row_mask:0xc bank_mask:0xf"]
    for st in steps:
        if len(regs) < 3:
            g.nop(2)
        for r in regs:
            e(f"{op}_dpp v{r}, v{r}, v{r} {st}")

def reduce_to_sgpr(op, r, sd):
    dpp_reduce(op, [r])
    g.nop(1)
    e(f"v_readlane_b32 s{sd}, v{r}, 63")
    g.nop(2)

def set_exec(lo, hi):
    e(f"s_mov_b32 exec_lo, {lo}")
    e(f"s_mov_b32 exec_hi, {hi}")

def full_exec():
    e("s_mov_b64 exec, -1")

ntf = " nt" if NT else ""
EARLY = "early" in OPTS
def stamp(i, early=False):
    if EARLY and i in (4, 5, 6) and not early:
        return
    if early and not EARLY:
        return
    if STAMPS:
        e("s_memrealtime s[100:101]")
        e("s_waitcnt lgkmcnt(0)")
        e(f"s_mov_b32 s{88+i}, s100")

_poll_id = [0]
def poll_granule(vdst, vaddr, ws_off, tag_src):
    n = _poll_id[0]; _poll_id[0] += 1
    e("s_mov_b32 s74, 0")
    g.lab(f"L_poll{n}")
    e(f"global_load_dwordx4 v[{vdst}:{vdst+3}], v{vaddr}, s[28:29] offset:{ws_off} sc1")
    e("s_waitcnt vmcnt(0)")
    e(f"v_cmp_ne_u32 vcc, {tag_src}, v{vdst+3}")
    e("s_add_u32 s74, s74, 1")
    g.nop(4)
    e(f"s_cbranch_vccz L_poll{n}_done")
    e("s_cmp_ge_u32 s74, 0x40000")
    e(f"s_cbranch_scc1 L_poll{n}_done")
    e("s_sleep 1")
    e(f"s_branch L_poll{n}")
    g.lab(f"L_poll{n}_done")

e("s_cmp_ge_u32 s2, 256")
e("s_cbranch_scc1 L_end")
stamp(0)
e("s_load_dwordx16 s[4:19], s[0:1], 0")
e("s_load_dwordx8 s[20:27], s[0:1], 64")
e("s_load_dwordx2 s[28:29], s[0:1], 96")
e("s_memrealtime s[86:87]")
e("v_and_b32 v1, 63, v0")
e("v_lshrrev_b32 v5, 6, v0")
g.nop(1)
e("v_readfirstlane_b32 s70, v5")
LINMAP = "linmap" in OPTS
if LINMAP:
    e("s_lshr_b32 s68, s2, 3")
    e("s_and_b32 s69, s2, 7")
else:
    e("s_and_b32 s68, s2, 7")
    e("s_lshl_b32 s68, s68, 2")
    e("s_lshr_b32 s69, s2, 3")
    e("s_and_b32 s69, s69, 3")
    e("s_add_u32 s68, s68, s69")
    e("s_lshr_b32 s69, s2, 5")
e("s_and_b32 s30, s2, 7")
e("s_lshl_b32 s30, s30, 5")
e("s_lshr_b32 s31, s2, 3")
e("s_add_u32 s30, s30, s31")
e("v_and_b32 v6, 7, v1")
e("v_mul_u32_u24 v2, 384, v6")
e("v_lshrrev_b32 v6, 3, v1")
e("v_lshlrev_b32 v6, 4, v6")
e("v_add_u32 v2, v2, v6")
e("v_lshrrev_b32 v7, 5, v1")
e("v_and_b32 v8, 31, v1")
e("v_mul_u32_u24 v3, 384, v7")
e("v_mul_u32_u24 v6, 12, v8")
e("v_add_u32 v3, v3, v6")
e("s_waitcnt lgkmcnt(0)")
def srd(base, ptr, nbytes):
    e(f"s_mov_b32 s{base}, s{ptr}")
    e(f"s_and_b32 s{base+1}, s{ptr+1}, 0xffff")
    e(f"s_mov_b32 s{base+2}, {nbytes}")
    e(f"s_mov_b32 s{base+3}, 0x00020000")
srd(56, 4, 1280)
srd(32, 6, 100663296)
srd(36, 8, 100663296)
srd(40, 10, 7864320)
srd(44, 12, 7864320)
srd(48, 16, 1966080)
srd(60, 18, 3072)
srd(52, 20, 1966080)
srd(64, 22, 1280)
for b in range(8):
    e(f"s_mov_b32 s{4+2*b}, {hex((0xff << (8*b)) & 0xffffffff) if b < 4 else 0}")
    e(f"s_mov_b32 s{5+2*b}, {hex((0xff << (8*(b-4))) & 0xffffffff) if b >= 4 else 0}")
e("s_mov_b32 s20, 0xff00ff00")
e("s_mov_b32 s21, 0xff00ff00")
e("s_mul_i32 s73, s68, 3145728")
e("s_mul_i32 s74, s69, 393216")
e("s_add_u32 s73, s73, s74")
e("s_mul_i32 s74, s70, 49152")
e("s_add_u32 s73, s73, s74")
e("s_or_b32 s86, s86, 1")
e("v_lshrrev_b32 v6, 5, v1")
e("s_lshl_b32 s72, s70, 1")
e("v_add_u32 v6, s72, v6")
e("v_mul_u32_u24 v6, 768, v6")
e("v_mul_u32_u24 v9, 24, v8")
e("v_add_u32 v13, v6, v9")
NSLOT = 48
STREAM = []
for t_ in range(2):
    STREAM += [("K", t_, i) for i in range(24)]
    STREAM += [("V", t_, i) for i in range(32)]
POS = {x: n for n, x in enumerate(STREAM)}
def slot_reg(kind, tile, idx):
    return 64 + 4 * (POS[(kind, tile, idx)] % NSLOT)
issued = [0]
lds_pending = [False]
def lds_prefetch():
    if NLDS == 0:
        return
    e(f"s_mul_i32 s74, s70, {NLDS*1024}")
    e(f"s_add_u32 s74, s74, {LBUF_OFF}")
    for i in range(NLDS):
        b, j = divmod(i, 3)
        e(f"s_add_u32 s72, s73, {24576 + b*3072 + 128*j}")
        e(f"s_add_u32 m0, s74, {1024*i}")
        if pacing[0] and PACE:
            e(f"s_waitcnt vmcnt({PACE-1})")
        else:
            e("s_nop 0")
        g.vmem(f"buffer_load_dwordx4 v2, s[32:35], s72 offen{ntf} lds", "KL")
PACE = 0
for o in OPTS:
    if o.startswith("pace"):
        PACE = int(o[4:])
pacing = [False]
def issue(n):
    for _ in range(n):
        if issued[0] >= len(STREAM):
            return
        if pacing[0] and PACE and len(g.vm) >= PACE:
            e(f"s_waitcnt vmcnt({PACE-1})")
        kind, tile, i = STREAM[issued[0]]
        r = 64 + 4 * (issued[0] % NSLOT)
        issued[0] += 1
        if kind == "K" and tile == 1 and i < NLDS:
            if i == 0:
                g.wait_tag("KL")
            e(f"ds_read_b128 v[{r}:{r+3}], v4 offset:{1024*i}")
            lds_pending[0] = True
        elif kind == "K":
            b, j = divmod(i, 3)
            e(f"s_add_u32 s72, s73, {tile*24576 + b*3072}")
            g.vmem(f"buffer_load_dwordx4 v[{r}:{r+3}], v2, s[32:35], s72 offen offset:{128*j}{ntf}", f"K{tile}_{i}")
        else:
            e(f"s_add_u32 s72, s73, {tile*24576 + i*768}")
            g.vmem(f"buffer_load_dwordx3 v[{r}:{r+2}], v3, s[36:39], s72 offen{ntf}", f"V{tile}_{i}")
def x_loads():
    e("v_lshlrev_b32 v5, 2, v1")
    for r in range(5):
        g.vmem(f"buffer_load_dword v{47+r}, v5, s[56:59], 0 offen offset:{256*r}", "x")
def x_unpack():
    for r in range(5):
        e(f"v_lshlrev_b32 v{52+2*r}, 16, v{47+r}")
        e(f"v_and_b32 v{53+2*r}, 0xffff0000, v{47+r}")
def layernorm(lds_off):
    e("v_add_f32 v43, v52, v53")
    for k in range(54, 62):
        e(f"v_add_f32 v43, v43, v{k}")
    reduce_to_sgpr("v_add_f32", 43, 74)
    e(f"v_mov_b32 v62, {INV640}")
    e("v_mul_f32 v62, s74, v62")
    e("v_sub_f32 v63, v52, v62")
    e("v_mul_f32 v43, v63, v63")
    for k in range(53, 62):
        e(f"v_sub_f32 v63, v{k}, v62")
        e("v_fma_f32 v43, v63, v63, v43")
    reduce_to_sgpr("v_add_f32", 43, 74)
    e(f"v_mov_b32 v63, {INV640}")
    e("v_mul_f32 v63, s74, v63")
    rnd(62, 62)
    rnd(63, 63)
    e(f"v_add_f32 v63, {EPS}, v63")
    rnd(63, 63)
    e("v_sqrt_f32 v63, v63")
    g.nop(1)
    rnd(63, 63)
    e("v_rcp_f32 v63, v63")
    g.nop(1)
    for k in range(52, 62):
        e(f"v_sub_f32 v{k}, v{k}, v62")
        rnd(k, k)
        e(f"v_mul_f32 v{k}, v{k}, v63")
        rnd(k, k)
    if lds_off is not None:
        e("v_lshlrev_b32 v5, 3, v1")
        for r in range(5):
            e(f"ds_write_b64 v5, v[{52+2*r}:{53+2*r}] offset:{lds_off + 512*r}")

if "streamonly" not in OPTS:
    e("s_cmp_eq_u32 s70, 0")
    e("s_cbranch_scc1 L_wave_q")
    e("s_cmp_eq_u32 s70, 1")
    e("s_cbranch_scc1 L_wave_h")
g.vm = []
e("s_barrier")
issued[0] = 0
INIT = NSLOT
for o in OPTS:
    if o.startswith("init"):
        INIT = int(o[4:])
pacing[0] = True
issue(INIT)
lds_prefetch()
pacing[0] = False
if "nobar" not in OPTS:
    e("s_barrier")
issue(NSLOT - INIT)
common_vm = list(g.vm)
e("s_branch L_join")

g.lab("L_wave_q")
if "noprio" not in OPTS:
    e("s_setprio 3")
g.vm = []
x_loads()
e("s_mul_i32 s71, s69, 80")
e("v_add_u32 v4, s71, v7")
e("v_mov_b32 v9, 12288")
e("v_mul_lo_u32 v4, v4, v9")
e("v_mul_u32_u24 v6, 12, v8")
e("v_add_u32 v4, v4, v6")
e("s_mul_i32 s72, s68, 384")
e("v_add_u32 v4, s72, v4")
e("s_mov_b32 s72, 0")
for i in range(40):
    r = 64 + 4 * i
    g.vmem(f"buffer_load_dwordx3 v[{r}:{r+2}], v4, s[40:43], s72 offen", f"wq{i//10}")
    if i != 39:
        e("s_add_u32 s72, s72, 24576")
e("s_lshl_b32 s72, s68, 3")
e("v_mov_b32 v9, s72")
e("v_mov_b32 v10, s86")
e("v_mov_b32 v11, 0")
set_exec("1", "0")
g.vmem("global_atomic_cmpswap v12, v9, v[10:11], s[26:27] sc0 sc1", "nonce")
full_exec()
e("s_barrier")
stamp(5, True)
g.wait_tag("x")
stamp(6, True)
x_unpack()
layernorm(XN_OFF)
e("s_waitcnt lgkmcnt(0)")
stamp(1)
for k in range(56, 62):
    e(f"v_mov_b32 v{k}, 0")
e("v_lshrrev_b32 v5, 5, v1")
e("v_add_u32 v5, s71, v5")
e("v_lshlrev_b32 v5, 2, v5")
for i in range(40):
    e(f"ds_read_b32 v{64+4*i+3}, v5 offset:{XN_OFF + 8*i}")
e("s_waitcnt lgkmcnt(0)")
for i in range(40):
    if i % 10 == 0:
        g.wait_tag(f"wq{i//10}")
    r = 64 + 4 * i
    e(f"v_lshrrev_b32 v14, 16, v{r+3}")
    for d in range(3):
        e(f"v_dot2_f32_bf16 v{56+2*d}, v{r+d}, v14, v{56+2*d}")
        e(f"v_dot2_f32_bf16 v{57+2*d}, v{r+d}, v{r+3}, v{57+2*d}")
g.nop(3)
e(f"ds_write_b64 v13, v[56:57] offset:{QPART_OFF}")
e(f"ds_write_b64 v13, v[58:59] offset:{QPART_OFF+8}")
e(f"ds_write_b64 v13, v[60:61] offset:{QPART_OFF+16}")
e("v_mul_u32_u24 v5, 12, v1")
e("s_waitcnt lgkmcnt(0)")
for d in range(3):
    e(f"ds_read_b32 v{16+d}, v5 offset:{QPART_OFF + 4*d}")
    e(f"ds_read_b32 v{20+d}, v5 offset:{QPART_OFF + 768 + 4*d}")
g.wait_tag("nonce")
e("v_readfirstlane_b32 s87, v12")
g.nop(3)
e("s_cmp_eq_u32 s87, 0")
e("s_cselect_b32 s86, s86, s87")
e("s_waitcnt lgkmcnt(0)")
for d in range(3):
    e(f"v_add_f32 v{16+d}, v{16+d}, v{20+d}")
e("v_mov_b32 v19, s86")
e("s_lshl_b32 s72, s68, 3")
e("s_add_u32 s72, s72, s69")
e("s_lshl_b32 s72, s72, 10")
e("v_lshlrev_b32 v9, 4, v1")
e("v_add_u32 v5, s72, v9")
e(f"global_store_dwordx4 v5, v[16:19], s[28:29] offset:{WS_Q} sc1")
e("v_mov_b32 v5, 0")
e("v_mov_b32 v6, s86")
e(f"ds_write_b32 v5, v6 offset:{NONCE_OFF}")
stamp(2)
e("s_lshl_b32 s72, s68, 13")
e("v_add_u32 v9, s72, v9")
e("s_mov_b32 s74, 0")
g.lab("L_qg")
for cc in range(8):
    if cc == 4:
        e("v_add_u32 v10, 4096, v9")
    a_ = "v9" if cc < 4 else "v10"
    e(f"global_load_dwordx4 v[{64+4*cc}:{67+4*cc}], {a_}, s[28:29] offset:{WS_Q + 1024*(cc%4)} sc1")
e("s_waitcnt vmcnt(0)")
e("v_cmp_ne_u32 vcc, s86, v67")
for cc in range(1, 8):
    e(f"v_cmp_ne_u32 s[78:79], s86, v{67+4*cc}")
    g.nop(1)
    e("s_or_b64 vcc, vcc, s[78:79]")
e("s_add_u32 s74, s74, 1")
g.nop(4)
e("s_cbranch_vccz L_qg_done")
e("s_cmp_ge_u32 s74, 0x40000")
e("s_cbranch_scc1 L_qg_done")
e("s_branch L_qg")
g.lab("L_qg_done")
for d in range(3):
    for st in (4, 2, 1):
        for k in range(st):
            e(f"v_add_f32 v{64+4*k+d}, v{64+4*k+d}, v{64+4*(k+st)+d}")
e("v_cvt_pk_bf16_f32 v64, v64, v64")
e("v_cvt_pk_bf16_f32 v65, v65, v65")
e("v_cvt_pk_bf16_f32 v66, v66, v66")
e("v_mul_u32_u24 v5, 6, v1")
e(f"ds_write_b16 v5, v64 offset:{QBF_OFF}")
e(f"ds_write_b16 v5, v65 offset:{QBF_OFF+2}")
e(f"ds_write_b16 v5, v66 offset:{QBF_OFF+4}")
e("s_waitcnt lgkmcnt(0)")
e("s_branch L_late_stream")

g.lab("L_wave_h")
g.vm = []
x_loads()
e("v_mul_u32_u24 v6, 3072, v1")
e("s_mul_i32 s72, s30, 12")
e("v_add_u32 v6, s72, v6")
e("s_mov_b32 s72, 0")
for r in range(10):
    g.vmem(f"buffer_load_dwordx3 v[{64+4*r}:{66+4*r}], v6, s[48:51], s72 offen", "w1")
    if r != 9:
        e(f"s_add_u32 s72, s72, {64*3072}")
e("s_mul_i32 s72, s30, 6")
e("v_add_u32 v6, s72, v1")
e("v_lshlrev_b32 v6, 1, v6")
g.vmem("buffer_load_ushort v15, v6, s[60:63], 0 offen", "b1")
e("s_barrier")
g.wait_tag("x")
x_unpack()
layernorm(None)
layernorm(Y_OFF)
e("s_waitcnt lgkmcnt(0)")
e("v_lshlrev_b32 v5, 2, v1")
for r in range(10):
    e(f"ds_read_b32 v{64+4*r+3}, v5 offset:{Y_OFF + 256*r}")
for k in range(16, 22):
    e(f"v_mov_b32 v{k}, 0")
g.wait_tag("b1")
e("s_waitcnt lgkmcnt(0)")
for r in range(10):
    rr = 64 + 4 * r
    e(f"v_lshrrev_b32 v14, 16, v{rr+3}")
    for d in range(3):
        e(f"v_dot2_f32_bf16 v{16+2*d}, v{rr+d}, v14, v{16+2*d}")
        e(f"v_dot2_f32_bf16 v{17+2*d}, v{rr+d}, v{rr+3}, v{17+2*d}")
g.nop(4)
dpp_reduce("v_add_f32", list(range(16, 22)))
e("v_mov_b32 v5, 0")
set_exec("0", "0x80000000")
e(f"ds_write_b64 v5, v[16:17] offset:{HPART_OFF}")
e(f"ds_write_b64 v5, v[18:19] offset:{HPART_OFF+8}")
e(f"ds_write_b64 v5, v[20:21] offset:{HPART_OFF+16}")
set_exec("0x3f", "0")
e("v_lshlrev_b32 v5, 2, v1")
e("s_waitcnt lgkmcnt(0)")
e(f"ds_read_b32 v40, v5 offset:{HPART_OFF}")
e("s_waitcnt lgkmcnt(0)")
rnd(40, 40)
e("v_lshlrev_b32 v41, 16, v15")
e("v_add_f32 v40, v40, v41")
rnd(40, 40)
e("v_mul_f32 v41, v40, v40")
e(f"v_mov_b32 v42, {f32(0.044715)}")
e("v_fma_f32 v41, v41, v42, 1.0")
e("v_mul_f32 v41, v41, v40")
e(f"v_mul_f32 v41, {f32(2.0 * math.sqrt(2.0 / math.pi) * 1.4426950408889634)}, v41")
e("v_exp_f32 v41, v41")
g.nop(1)
e("v_add_f32 v41, 1.0, v41")
e("v_rcp_f32 v41, v41")
g.nop(1)
e("v_fma_f32 v40, -v40, v41, v40")
rnd(40, 40)
e(f"ds_write_b32 v5, v40 offset:{H_OFF}")
full_exec()
e("s_waitcnt vmcnt(0) lgkmcnt(0)")
g.vm = []
issued[0] = 0
pacing[0] = True
issue(INIT)
lds_prefetch()
pacing[0] = False
e("s_barrier")
issue(NSLOT - INIT)
assert g.vm == common_vm
e("s_branch L_join")
g.lab("L_late_stream")
e("s_barrier")
e("s_setprio 0")
g.vm = []
issued[0] = 0
issue(INIT)
lds_prefetch()
issue(NSLOT - INIT)
assert g.vm == common_vm
g.lab("L_join")
stamp(3)
e("v_mov_b32 v5, 0")
e(f"ds_read_b32 v6, v5 offset:{NONCE_OFF}")
e("v_lshrrev_b32 v5, 4, v1")
e("v_lshlrev_b32 v5, 1, v5")
e("v_and_b32 v7, 1, v1")
e("v_add_u32 v5, v5, v7")
e("v_lshlrev_b32 v5, 4, v5")
for j in range(3):
    e(f"ds_read_b128 v[{16+4*j}:{19+4*j}], v5 offset:{QBF_OFF + 128*j}")
e("v_lshrrev_b32 v5, 5, v1")
e("v_lshlrev_b32 v5, 2, v5")
for k in range(56, 62):
    e(f"v_mov_b32 v{k}, 0")
e("s_waitcnt lgkmcnt(0)")
e("v_readfirstlane_b32 s86, v6")
g.nop(3)
if NLDS:
    e(f"s_mul_i32 s74, s70, {NLDS*1024}")
    e(f"s_add_u32 s74, s74, {LBUF_OFF}")
    e("v_lshlrev_b32 v4, 4, v1")
    e("v_add_u32 v4, s74, v4")

def qk(tile):
    for half in range(2):
        for bb in range(4):
            b = 4 * half + bb
            if tile == 1 and 3 * b + 2 < NLDS:
                if lds_pending[0]:
                    e("s_waitcnt lgkmcnt(0)")
                    lds_pending[0] = False
            else:
                if tile == 1 and lds_pending[0]:
                    e("s_waitcnt lgkmcnt(0)")
                    lds_pending[0] = False
                g.wait_tag(f"K{tile}_{3*b+2}")
            for j in range(3):
                r = slot_reg("K", tile, 3 * b + j)
                c = "0" if j == 0 else f"v[{40+4*bb}:{43+4*bb}]"
                e(f"v_mfma_f32_16x16x32_bf16 v[{40+4*bb}:{43+4*bb}], v[{16+4*j}:{19+4*j}], v[{r}:{r+3}], {c}")
            issue(3)
        g.nop(10)
        for bb in range(4):
            e(f"v_cndmask_b32 v{40+4*bb}, v{40+4*bb}, v{41+4*bb}, s[20:21]")
        g.nop(1)
        for bb in range(4):
            e(f"v_add_f32_dpp v{41+4*bb}, v{40+4*bb}, v{40+4*bb} row_ror:8 row_mask:0xf bank_mask:0xf")
        for bb in range(4):
            b = 4 * half + bb
            if b == 0:
                e("v_mov_b32 v62, v41")
            else:
                e(f"v_cndmask_b32 v62, v62, v{41+4*bb}, s[{4+2*b}:{5+2*b}]")
    rnd(62, 62)
    e(f"v_mul_f32 v62, {SCALE}, v62")
    rnd(62, 62)
    e("v_mov_b32 v63, v62")
    reduce_to_sgpr("v_max_f32", 63, 76)
def softmax(tile):
    if tile == 0:
        e("s_mov_b32 s77, s76")
        e("v_subrev_f32 v62, s77, v62")
        e(f"v_mul_f32 v62, {LOG2E}, v62")
        e("v_exp_f32 v62, v62")
        g.nop(1)
        e("v_mov_b32 v12, v62")
    else:
        e("v_mov_b32 v6, s76")
        e("v_max_f32 v6, s77, v6")
        g.nop(1)
        e("v_readfirstlane_b32 s78, v6")
        e("v_sub_f32 v6, s77, v6")
        e(f"v_mul_f32 v6, {LOG2E}, v6")
        e("v_exp_f32 v6, v6")
        e("s_mov_b32 s77, s78")
        g.nop(2)
        e("v_subrev_f32 v62, s77, v62")
        e(f"v_mul_f32 v62, {LOG2E}, v62")
        e("v_exp_f32 v62, v62")
        for k in range(56, 62):
            e(f"v_mul_f32 v{k}, v{k}, v6")
        e("v_fma_f32 v12, v12, v6, v62")
    rnd(62, 62)
def pv(tile):
    for i in range(32):
        e(f"ds_bpermute_b32 v{slot_reg('V', tile, i)+3}, v5, v62 offset:{8*i}")
        if i % 8 == 7:
            e("s_waitcnt lgkmcnt(0)")
    for i in range(32):
        r = slot_reg("V", tile, i)
        if i % 2 == 0:
            g.wait_tag(f"V{tile}_{i+1}")
        e(f"v_lshrrev_b32 v14, 16, v{r+3}")
        for d in range(3):
            e(f"v_dot2_f32_bf16 v{56+2*d}, v{r+d}, v14, v{56+2*d}")
            e(f"v_dot2_f32_bf16 v{57+2*d}, v{r+d}, v{r+3}, v{57+2*d}")
        if i % 2 == 1:
            issue(2)

qk(0)
stamp(4)
softmax(0)
pv(0)
stamp(5)
qk(1)
stamp(6)
e("v_mov_b32 v7, 52429")
e("v_mul_u32_u24 v7, v0, v7")
e("v_lshrrev_b32 v7, 22, v7")
e("v_mul_u32_u24 v8, 80, v7")
e("v_sub_u32 v8, v0, v8")
e("v_lshlrev_b32 v9, 2, v7")
e("s_mul_i32 s72, s68, 192")
e("s_mul_i32 s74, s69, 24")
e("s_add_u32 s72, s72, s74")
e("v_add_u32 v9, s72, v9")
e("v_mul_u32_u24 v9, 1280, v9")
e("v_lshlrev_b32 v10, 4, v8")
e("v_add_u32 v9, v9, v10")
for i in range(4):
    g.vmem(f"buffer_load_dwordx4 v[{144+4*i}:{147+4*i}], v9, s[44:47], 0 offen offset:{1280*i}", "wo")
e("s_mul_i32 s72, s30, 6")
e("v_add_u32 v9, s72, v7")
e("v_mul_u32_u24 v9, 1280, v9")
e("v_add_u32 v9, v9, v10")
g.vmem("buffer_load_dwordx4 v[140:143], v9, s[52:55], 0 offen", "w2")
e("v_mov_b32 v138, v7")
e("v_mov_b32 v139, v8")
if LINMAP:
    e("v_lshrrev_b32 v9, 3, v0")
    e("v_and_b32 v9, 31, v9")
else:
    e("v_and_b32 v9, 7, v0")
    e("v_lshlrev_b32 v9, 2, v9")
    e("v_lshrrev_b32 v10, 3, v0")
    e("v_and_b32 v10, 3, v10")
    e("v_add_u32 v9, v9, v10")
e("v_lshlrev_b32 v9, 3, v9")
e("v_mov_b32 v135, v9")
g.vmem("global_load_dword v137, v9, s[26:27] sc1", "nonces")
softmax(1)
pv(1)
stamp(7)
if "streamonly" in OPTS:
    e("s_branch L_fin")

reduce_to_sgpr("v_add_f32", 12, 79)
e(f"ds_write_b64 v13, v[56:57] offset:{QPART_OFF}")
e(f"ds_write_b64 v13, v[58:59] offset:{QPART_OFF+8}")
e(f"ds_write_b64 v13, v[60:61] offset:{QPART_OFF+16}")
e("v_mov_b32 v6, s77")
e("v_mov_b32 v7, s79")
e("s_lshl_b32 s72, s70, 3")
e("v_mov_b32 v5, s72")
set_exec("1", "0")
e(f"ds_write_b64 v5, v[6:7] offset:{ML_OFF}")
full_exec()
e("s_waitcnt lgkmcnt(0)")
e("s_barrier")
e("s_cmp_ge_u32 s70, 3")
e("s_cbranch_scc1 L_comb_done")
e("v_mov_b32 v5, 0")
for w in range(8):
    e(f"ds_read_b64 v[{40+2*w}:{41+2*w}], v5 offset:{ML_OFF + 8*w}")
e("v_lshlrev_b32 v5, 2, v0")
for k in range(16):
    e(f"ds_read_b32 v{64+k}, v5 offset:{QPART_OFF + 768*k}")
e("s_waitcnt lgkmcnt(0)")
e("v_max_f32 v6, v40, v42")
for w in range(2, 8):
    e(f"v_max_f32 v6, v6, v{40+2*w}")
for w in range(8):
    e(f"v_sub_f32 v{40+2*w}, v{40+2*w}, v6")
    e(f"v_mul_f32 v{40+2*w}, {LOG2E}, v{40+2*w}")
    e(f"v_exp_f32 v{40+2*w}, v{40+2*w}")
g.nop(1)
e("v_mul_f32 v7, v40, v41")
for w in range(1, 8):
    e(f"v_fma_f32 v7, v{40+2*w}, v{41+2*w}, v7")
for w in range(8):
    e(f"v_add_f32 v{64+2*w}, v{64+2*w}, v{65+2*w}")
e("v_mul_f32 v8, v40, v64")
for w in range(1, 8):
    e(f"v_fma_f32 v8, v{40+2*w}, v{64+2*w}, v8")
e(f"ds_write_b32 v5, v8 offset:{OSUM_OFF}")
e("s_cmp_lg_u32 s70, 0")
e("s_cbranch_scc1 L_comb_done")
set_exec("1", "0")
e(f"ds_write_b64 v5, v[6:7] offset:{OSUM_OFF+768}")
full_exec()
g.lab("L_comb_done")
e("s_waitcnt lgkmcnt(0)")
e("s_barrier")
e("s_lshl_b32 s72, s68, 3")
e("s_add_u32 s72, s72, s69")
e("s_lshl_b32 s72, s72, 11")
e(f"s_add_u32 s72, s72, {WS_O}")
e("s_cmp_gt_u32 s70, 1")
e("s_cbranch_scc1 L_opub_done")
e("v_mul_u32_u24 v5, 12, v0")
e(f"ds_read_b32 v40, v5 offset:{OSUM_OFF}")
e(f"ds_read_b32 v41, v5 offset:{OSUM_OFF+4}")
e(f"ds_read_b32 v42, v5 offset:{OSUM_OFF+8}")
e("v_mov_b32 v43, s86")
e("v_lshlrev_b32 v6, 4, v0")
e("v_add_u32 v6, s72, v6")
e("s_cmp_eq_u32 s70, 0")
e("s_cbranch_scc1 L_opub_st")
set_exec("1", "0")
g.lab("L_opub_st")
e("s_waitcnt lgkmcnt(0)")
e("global_store_dwordx4 v6, v[40:43], s[28:29] sc1")
full_exec()
g.lab("L_opub_done")
e("s_cmp_gt_u32 s70, 1")
e("s_cbranch_scc1 L_og_done")
e("s_lshl_b32 s72, s68, 14")
e(f"s_add_u32 s72, s72, {WS_O}")
e("s_cmp_eq_u32 s70, 1")
e("s_cbranch_scc1 L_og_ml")
e("v_lshrrev_b32 v6, 3, v1")
e("v_lshlrev_b32 v9, 11, v6")
e("v_and_b32 v7, 7, v1")
e("s_lshl_b32 s74, s69, 3")
e("v_add_u32 v8, s74, v7")
e("v_lshlrev_b32 v8, 4, v8")
e("v_add_u32 v9, v9, v8")
e("v_add_u32 v9, s72, v9")
poll_granule(40, 9, 0, "s86")
e("v_mul_u32_u24 v5, 96, v6")
e("v_mul_u32_u24 v7, 12, v7")
e("v_add_u32 v5, v5, v7")
e(f"ds_write_b32 v5, v40 offset:{OG_OFF}")
e(f"ds_write_b32 v5, v41 offset:{OG_OFF+4}")
e(f"ds_write_b32 v5, v42 offset:{OG_OFF+8}")
e("s_branch L_og_done")
g.lab("L_og_ml")
set_exec("0xff", "0")
e("v_lshlrev_b32 v9, 11, v1")
e("v_add_u32 v9, s72, v9")
poll_granule(40, 9, 1024, "s86")
e("v_lshlrev_b32 v5, 3, v1")
e(f"ds_write_b64 v5, v[40:41] offset:{OG_OFF+768}")
full_exec()
g.lab("L_og_done")
e("s_waitcnt lgkmcnt(0)")
e("s_barrier")
e("s_cmp_lg_u32 s70, 0")
e("s_cbranch_scc1 L_ofin_done")
set_exec("0xffffff", "0")
e("v_mov_b32 v5, 0")
for w in range(8):
    e(f"ds_read_b64 v[{40+2*w}:{41+2*w}], v5 offset:{OG_OFF + 768 + 8*w}")
e("v_lshlrev_b32 v5, 2, v1")
for w in range(8):
    e(f"ds_read_b32 v{64+w}, v5 offset:{OG_OFF + 96*w}")
e("s_waitcnt lgkmcnt(0)")
e("v_max_f32 v6, v40, v42")
for w in range(2, 8):
    e(f"v_max_f32 v6, v6, v{40+2*w}")
for w in range(8):
    e(f"v_sub_f32 v{40+2*w}, v{40+2*w}, v6")
    e(f"v_mul_f32 v{40+2*w}, {LOG2E}, v{40+2*w}")
    e(f"v_exp_f32 v{40+2*w}, v{40+2*w}")
g.nop(1)
e("v_mul_f32 v7, v40, v41")
for w in range(1, 8):
    e(f"v_fma_f32 v7, v{40+2*w}, v{41+2*w}, v7")
e("v_mul_f32 v8, v40, v64")
for w in range(1, 8):
    e(f"v_fma_f32 v8, v{40+2*w}, v{64+w}, v8")
e("v_rcp_f32 v7, v7")
g.nop(1)
e("v_mul_f32 v8, v8, v7")
rnd(8, 8)
e(f"ds_write_b32 v5, v8 offset:{OFIN_OFF}")
full_exec()
e("s_waitcnt lgkmcnt(0)")
g.lab("L_ofin_done")
e("s_barrier")
stamp(8)
e("v_lshlrev_b32 v5, 4, v138")
e(f"ds_read_b128 v[6:9], v5 offset:{OFIN_OFF}")
e("v_lshlrev_b32 v5, 2, v138")
e(f"ds_read_b32 v10, v5 offset:{H_OFF}")
for k in range(40, 56):
    e(f"v_mov_b32 v{k}, 0")
e("s_waitcnt vmcnt(0) lgkmcnt(0)")
for i in range(4):
    e(f"v_lshrrev_b32 v14, 16, v{6+i}")
    for d in range(4):
        e(f"v_dot2_f32_bf16 v{40+2*d}, v{144+4*i+d}, v14, v{40+2*d}")
        e(f"v_dot2_f32_bf16 v{41+2*d}, v{144+4*i+d}, v{6+i}, v{41+2*d}")
e("v_lshrrev_b32 v14, 16, v10")
for d in range(4):
    e(f"v_dot2_f32_bf16 v{48+2*d}, v{140+d}, v14, v{48+2*d}")
    e(f"v_dot2_f32_bf16 v{49+2*d}, v{140+d}, v10, v{49+2*d}")
e("v_mul_u32_u24 v5, 2560, v138")
e("v_lshlrev_b32 v6, 5, v139")
e("v_add_u32 v5, v5, v6")
e("v_cmp_gt_u32 vcc, 480, v0")
e("s_and_saveexec_b64 s[78:79], vcc")
g.nop(2)
e(f"ds_write_b128 v5, v[40:43] offset:{S2_OFF}")
e(f"ds_write_b128 v5, v[44:47] offset:{S2_OFF+16}")
e(f"ds_write_b128 v5, v[48:51] offset:{S2_OFF+15360}")
e(f"ds_write_b128 v5, v[52:55] offset:{S2_OFF+15360+16}")
full_exec()
e("s_waitcnt lgkmcnt(0)")
e("s_barrier")
e("v_cmp_le_u32 vcc, 214, v0")
e("v_subrev_u32 v6, 214, v0")
g.nop(1)
e("v_cndmask_b32 v6, v0, v6, vcc")
e("v_cndmask_b32 v7, 0, 1, vcc")
e("v_mul_u32_u24 v5, 15360, v7")
e("v_mul_u32_u24 v8, 12, v6")
e("v_add_u32 v5, v5, v8")
e("v_cmp_gt_u32 vcc, 428, v0")
e("s_and_saveexec_b64 s[78:79], vcc")
e("s_cbranch_execz L_s2_done")
for rg in range(6):
    for k in range(3):
        e(f"ds_read_b32 v{40+4*rg+k}, v5 offset:{S2_OFF + 2560*rg + 4*k}")
e("s_waitcnt lgkmcnt(0)")
for rg in range(1, 6):
    for k in range(3):
        e(f"v_add_f32 v{40+k}, v{40+k}, v{40+4*rg+k}")
e("v_mov_b32 v43, s86")
e("v_mul_u32_u24 v9, 3424, v7")
e("v_lshlrev_b32 v8, 4, v6")
e("v_add_u32 v9, v9, v8")
e("s_lshl_b32 s72, s2, 13")
e(f"s_add_u32 s72, s72, {WS_S}")
e("v_add_u32 v9, s72, v9")
e("global_store_dwordx4 v9, v[40:43], s[28:29] sc1")
g.lab("L_s2_done")
full_exec()
e("s_cmp_ge_u32 s2, 214")
e("s_cbranch_scc1 L_fin")
e("v_lshrrev_b32 v7, 8, v0")
e("v_and_b32 v6, 255, v0")
e("v_lshlrev_b32 v6, 13, v6")
e("v_mul_u32_u24 v9, 3424, v7")
e("v_add_u32 v9, v9, v6")
e("s_lshl_b32 s72, s2, 4")
e(f"s_add_u32 s72, s72, {WS_S}")
e("v_add_u32 v9, s72, v9")
e("s_mul_i32 s72, s2, 3")
e("v_add_u32 v5, s72, v1")
e("v_lshlrev_b32 v5, 1, v5")
e("buffer_load_ushort v44, v5, s[56:59], 0 offen")
e("buffer_load_ushort v45, v5, s[64:67], 0 offen")
e("s_mov_b32 s74, 0")
g.lab("L_fpoll")
e("global_load_dwordx4 v[40:43], v9, s[28:29] sc1")
e("s_waitcnt vmcnt(0)")
e("v_cmp_ne_u32 vcc, v137, v43")
e("v_cmp_eq_u32 s[78:79], 0, v137")
e("s_add_u32 s74, s74, 1")
g.nop(4)
e("s_or_b64 vcc, vcc, s[78:79]")
g.nop(4)
e("s_cbranch_vccz L_fpoll_done")
e("s_cmp_ge_u32 s74, 0x40000")
e("s_cbranch_scc1 L_fpoll_done")
e("s_sleep 1")
e("global_load_dword v137, v135, s[26:27] sc1")
e("s_branch L_fpoll")
g.lab("L_fpoll_done")
stamp(9)
dpp_reduce("v_add_f32", [40, 41, 42])
e("s_lshl_b32 s72, s70, 4")
e("v_mov_b32 v6, s72")
set_exec("0", "0x80000000")
e(f"ds_write_b128 v6, v[40:43] offset:{RED_OFF}")
full_exec()
e("s_waitcnt lgkmcnt(0)")
e("s_barrier")
e("s_cmp_lg_u32 s70, 0")
e("s_cbranch_scc1 L_fin")
set_exec("0x7", "0")
e("v_lshlrev_b32 v6, 2, v1")
for w in range(8):
    e(f"ds_read_b32 v{48+w}, v6 offset:{RED_OFF + 16*w}")
e("s_waitcnt lgkmcnt(0)")
e("v_add_f32 v48, v48, v49")
e("v_add_f32 v50, v50, v51")
e("v_add_f32 v48, v48, v50")
e("v_add_f32 v52, v52, v53")
e("v_add_f32 v54, v54, v55")
e("v_add_f32 v52, v52, v54")
rnd(48, 48)
rnd(52, 52)
e("v_lshlrev_b32 v45, 16, v45")
e("v_add_f32 v52, v52, v45")
rnd(52, 52)
e(f"v_mul_f32 v53, {f32(-1.4426950408889634)}, v52")
e("v_exp_f32 v53, v53")
g.nop(1)
e("v_add_f32 v53, 1.0, v53")
e("v_rcp_f32 v53, v53")
g.nop(1)
e("v_mul_f32 v52, v52, v53")
rnd(52, 52)
e("v_mul_f32 v48, v48, v52")
rnd(48, 48)
e("v_lshlrev_b32 v44, 16, v44")
e("v_add_f32 v48, v44, v48")
e("v_cvt_pk_bf16_f32 v48, v48, v48")
e("v_cmp_gt_u32 vcc, 1280, v5")
e("s_and_saveexec_b64 s[78:79], vcc")
e("s_cbranch_execz L_nostore")
e("global_store_short v5, v48, s[24:25]")
g.lab("L_nostore")
full_exec()
g.lab("L_fin")
if STAMPS:
    stamp(10)
    e("s_lshl_b32 s72, s2, 3")
    e("s_add_u32 s72, s72, s70")
    e("s_lshl_b32 s72, s72, 6")
    e(f"s_add_u32 s72, s72, {WS_STAMP}")
    e("v_mov_b32 v5, s72")
    set_exec("1", "0")
    for i in range(11):
        e(f"v_mov_b32 v6, s{88+i}")
        e(f"global_store_dword v5, v6, s[28:29] offset:{4*i}")
        e("s_waitcnt vmcnt(0)")
    full_exec()
g.lab("L_end")
e("s_endpgm")

hdr = open(f"cdna_kernels/{NAME}.s.ref").read().split("; Override launch")[0]
txt = hdr + f"""; Override launch geometry by editing the next line (default: block=256,
; grid=ceil(out_elems/256), lds=0). Harness parses it; keep it on one line.
; @launch grid=(256,1,1) block=(512,1,1) lds={LDS_BYTES}
.amdgcn_target "amdgcn-amd-amdhsa--gfx950"
.text
.globl {NAME}_kernel
.p2align 8
.type {NAME}_kernel,@function
{NAME}_kernel:
""" + "\n".join(g.L) + f"""
.section .rodata,"a"
.p2align 6
.amdhsa_kernel {NAME}_kernel
  .amdhsa_next_free_vgpr 256
  .amdhsa_next_free_sgpr 102
  .amdhsa_accum_offset 256
  .amdhsa_group_segment_fixed_size 0
  .amdhsa_kernarg_size 104
  .amdhsa_user_sgpr_count 2
  .amdhsa_user_sgpr_kernarg_segment_ptr 1
  .amdhsa_system_sgpr_workgroup_id_x 1
.end_amdhsa_kernel
"""
open(OUT, "w").write(txt)
print("wrote", OUT, len(g.L), "lines")
```

```python
import struct, sys, math

NAME = "recurrent_scan__gqa_block_cached__mixer_channel_mlp__decode"
OUT = sys.argv[1] if len(sys.argv) > 1 else f"cdna_kernels/{NAME}.s"
OPTS = set(sys.argv[2:])
NT = "nont" not in OPTS
STAMPS = "stamps" in OPTS

def f32(x):
    return "0x%08x" % struct.unpack("<I", struct.pack("<f", x))[0]

LOG2E = f32(1.4426950408889634)
SCALE = f32(192 ** -0.5)
INV640 = f32(1.0 / 640.0)
EPS = f32(1e-5)

XN_OFF = 0
Y_OFF = 2560
QPART_OFF = 5120
HPART_OFF = 17408
QBF_OFF = 17664
H_OFF = 18048
ML_OFF = 18080
OFIN_OFF = 18144
RED_OFF = 18240
NONCE_OFF = 18400
OSUM_OFF = 18432
OG_OFF = 19456
S2_OFF = 20480
LBUF_OFF = 20480
NLDS = 0
for o in OPTS:
    if o.startswith("lds"):
        NLDS = int(o[3:])
LDS_BYTES = max(S2_OFF + 2 * 6 * 2560 + 64, LBUF_OFF + 8 * NLDS * 1024)
WS_Q = 0
WS_O = 0x40000
WS_S = 0x100000
WS_STAMP = 0x400000

class G:
    def __init__(s):
        s.L = []
        s.vm = []
    def e(s, t):
        s.L.append("    " + t)
    def lab(s, t):
        s.L.append(t + ":")
    def vmem(s, t, tag):
        s.e(t)
        s.vm.append(tag)
    def wait_tag(s, tag):
        idx = max(i for i, t in enumerate(s.vm) if t == tag)
        n = min(len(s.vm) - 1 - idx, 63)
        s.e(f"s_waitcnt vmcnt({n})")
    def nop(s, n):
        while n > 0:
            k = min(n, 16)
            s.e(f"s_nop {k-1}")
            n -= k

g = G()
e = g.e

def rnd(dst, src):
    e(f"v_cvt_pk_bf16_f32 v{dst}, v{src}, v{src}")
    e(f"v_and_b32 v{dst}, 0xffff0000, v{dst}")

def dpp_reduce(op, regs):
    steps = ["row_shr:1 row_mask:0xf bank_mask:0xf", "row_shr:2 row_mask:0xf bank_mask:0xf",
             "row_shr:4 row_mask:0xf bank_mask:0xf", "row_shr:8 row_mask:0xf bank_mask:0xf",
             "row_bcast:15 row_mask:0xa bank_mask:0xf", "row_bcast:31 row_mask:0xc bank_mask:0xf"]
    for st in steps:
        if len(regs) < 3:
            g.nop(2)
        for r in regs:
            e(f"{op}_dpp v{r}, v{r}, v{r} {st}")

def reduce_to_sgpr(op, r, sd):
    dpp_reduce(op, [r])
    g.nop(1)
    e(f"v_readlane_b32 s{sd}, v{r}, 63")
    g.nop(2)

def set_exec(lo, hi):
    e(f"s_mov_b32 exec_lo, {lo}")
    e(f"s_mov_b32 exec_hi, {hi}")

def full_exec():
    e("s_mov_b64 exec, -1")

ntf = " nt" if NT else ""
EARLY = "early" in OPTS
def stamp(i, early=False):
    if EARLY and i in (4, 5, 6) and not early:
        return
    if early and not EARLY:
        return
    if STAMPS:
        e("s_memrealtime s[100:101]")
        e("s_waitcnt lgkmcnt(0)")
        e(f"s_mov_b32 s{88+i}, s100")

_poll_id = [0]
def poll_granule(vdst, vaddr, ws_off, tag_src):
    n = _poll_id[0]; _poll_id[0] += 1
    e("s_mov_b32 s74, 0")
    g.lab(f"L_poll{n}")
    e(f"global_load_dwordx4 v[{vdst}:{vdst+3}], v{vaddr}, s[28:29] offset:{ws_off} sc1")
    e("s_waitcnt vmcnt(0)")
    e(f"v_cmp_ne_u32 vcc, {tag_src}, v{vdst+3}")
    e("s_add_u32 s74, s74, 1")
    g.nop(4)
    e(f"s_cbranch_vccz L_poll{n}_done")
    e("s_cmp_ge_u32 s74, 0x40000")
    e(f"s_cbranch_scc1 L_poll{n}_done")
    if "nosleep" not in OPTS:
        e("s_sleep 1")
    e(f"s_branch L_poll{n}")
    g.lab(f"L_poll{n}_done")

e("s_cmp_ge_u32 s2, 256")
e("s_cbranch_scc1 L_end")
stamp(0)
e("s_load_dwordx16 s[4:19], s[0:1], 0")
e("s_load_dwordx8 s[20:27], s[0:1], 64")
e("s_load_dwordx2 s[28:29], s[0:1], 96")
e("s_memrealtime s[86:87]")
e("v_and_b32 v1, 63, v0")
e("v_lshrrev_b32 v5, 6, v0")
g.nop(1)
e("v_readfirstlane_b32 s70, v5")
LINMAP = "linmap" in OPTS
if LINMAP:
    e("s_lshr_b32 s68, s2, 3")
    e("s_and_b32 s69, s2, 7")
else:
    e("s_and_b32 s68, s2, 7")
    e("s_lshl_b32 s68, s68, 2")
    e("s_lshr_b32 s69, s2, 3")
    e("s_and_b32 s69, s69, 3")
    e("s_add_u32 s68, s68, s69")
    e("s_lshr_b32 s69, s2, 5")
e("s_and_b32 s30, s2, 7")
e("s_lshl_b32 s30, s30, 5")
e("s_lshr_b32 s31, s2, 3")
e("s_add_u32 s30, s30, s31")
e("v_and_b32 v6, 7, v1")
e("v_mul_u32_u24 v2, 384, v6")
e("v_lshrrev_b32 v6, 3, v1")
e("v_lshlrev_b32 v6, 4, v6")
e("v_add_u32 v2, v2, v6")
e("v_lshrrev_b32 v7, 5, v1")
e("v_and_b32 v8, 31, v1")
e("v_mul_u32_u24 v3, 384, v7")
e("v_mul_u32_u24 v6, 12, v8")
e("v_add_u32 v3, v3, v6")
e("s_waitcnt lgkmcnt(0)")
def srd(base, ptr, nbytes):
    e(f"s_mov_b32 s{base}, s{ptr}")
    e(f"s_and_b32 s{base+1}, s{ptr+1}, 0xffff")
    e(f"s_mov_b32 s{base+2}, {nbytes}")
    e(f"s_mov_b32 s{base+3}, 0x00020000")
srd(56, 4, 1280)
srd(32, 6, 100663296)
srd(36, 8, 100663296)
srd(40, 10, 7864320)
srd(44, 12, 7864320)
srd(48, 16, 1966080)
srd(60, 18, 3072)
srd(52, 20, 1966080)
srd(64, 22, 1280)
for b in range(8):
    e(f"s_mov_b32 s{4+2*b}, {hex((0xff << (8*b)) & 0xffffffff) if b < 4 else 0}")
    e(f"s_mov_b32 s{5+2*b}, {hex((0xff << (8*(b-4))) & 0xffffffff) if b >= 4 else 0}")
e("s_mov_b32 s20, 0xff00ff00")
e("s_mov_b32 s21, 0xff00ff00")
e("s_mul_i32 s73, s68, 3145728")
e("s_mul_i32 s74, s69, 393216")
e("s_add_u32 s73, s73, s74")
e("s_mul_i32 s74, s70, 49152")
e("s_add_u32 s73, s73, s74")
e("s_or_b32 s86, s86, 1")
e("v_lshrrev_b32 v6, 5, v1")
e("s_lshl_b32 s72, s70, 1")
e("v_add_u32 v6, s72, v6")
e("v_mul_u32_u24 v6, 768, v6")
e("v_mul_u32_u24 v9, 24, v8")
e("v_add_u32 v13, v6, v9")
NSLOT = 48
STREAM = []
for t_ in range(2):
    STREAM += [("K", t_, i) for i in range(24)]
    STREAM += [("V", t_, i) for i in range(32)]
POS = {x: n for n, x in enumerate(STREAM)}
def slot_reg(kind, tile, idx):
    return 64 + 4 * (POS[(kind, tile, idx)] % NSLOT)
issued = [0]
lds_pending = [False]
def lds_prefetch():
    if NLDS == 0:
        return
    e(f"s_mul_i32 s74, s70, {NLDS*1024}")
    e(f"s_add_u32 s74, s74, {LBUF_OFF}")
    for i in range(NLDS):
        b, j = divmod(i, 3)
        e(f"s_add_u32 s72, s73, {24576 + b*3072 + 128*j}")
        e(f"s_add_u32 m0, s74, {1024*i}")
        if pacing[0] and PACE:
            e(f"s_waitcnt vmcnt({PACE-1})")
        else:
            e("s_nop 0")
        g.vmem(f"buffer_load_dwordx4 v2, s[32:35], s72 offen{ntf} lds", "KL")
PACE = 0
for o in OPTS:
    if o.startswith("pace"):
        PACE = int(o[4:])
pacing = [False]
def issue(n):
    for _ in range(n):
        if issued[0] >= len(STREAM):
            return
        if pacing[0] and PACE and len(g.vm) >= PACE:
            e(f"s_waitcnt vmcnt({PACE-1})")
        kind, tile, i = STREAM[issued[0]]
        r = 64 + 4 * (issued[0] % NSLOT)
        issued[0] += 1
        if kind == "K" and tile == 1 and i < NLDS:
            if i == 0:
                g.wait_tag("KL")
            e(f"ds_read_b128 v[{r}:{r+3}], v4 offset:{1024*i}")
            lds_pending[0] = True
        elif kind == "K":
            b, j = divmod(i, 3)
            e(f"s_add_u32 s72, s73, {tile*24576 + b*3072}")
            g.vmem(f"buffer_load_dwordx4 v[{r}:{r+3}], v2, s[32:35], s72 offen offset:{128*j}{ntf}", f"K{tile}_{i}")
        else:
            e(f"s_add_u32 s72, s73, {tile*24576 + i*768}")
            g.vmem(f"buffer_load_dwordx3 v[{r}:{r+2}], v3, s[36:39], s72 offen{ntf}", f"V{tile}_{i}")
def x_loads():
    e("v_lshlrev_b32 v5, 2, v1")
    for r in range(5):
        g.vmem(f"buffer_load_dword v{47+r}, v5, s[56:59], 0 offen offset:{256*r}", "x")
def x_unpack():
    for r in range(5):
        e(f"v_lshlrev_b32 v{52+2*r}, 16, v{47+r}")
        e(f"v_and_b32 v{53+2*r}, 0xffff0000, v{47+r}")
def layernorm(lds_off):
    e("v_add_f32 v43, v52, v53")
    for k in range(54, 62):
        e(f"v_add_f32 v43, v43, v{k}")
    reduce_to_sgpr("v_add_f32", 43, 74)
    e(f"v_mov_b32 v62, {INV640}")
    e("v_mul_f32 v62, s74, v62")
    e("v_sub_f32 v63, v52, v62")
    e("v_mul_f32 v43, v63, v63")
    for k in range(53, 62):
        e(f"v_sub_f32 v63, v{k}, v62")
        e("v_fma_f32 v43, v63, v63, v43")
    reduce_to_sgpr("v_add_f32", 43, 74)
    e(f"v_mov_b32 v63, {INV640}")
    e("v_mul_f32 v63, s74, v63")
    rnd(62, 62)
    rnd(63, 63)
    e(f"v_add_f32 v63, {EPS}, v63")
    rnd(63, 63)
    e("v_sqrt_f32 v63, v63")
    g.nop(1)
    rnd(63, 63)
    e("v_rcp_f32 v63, v63")
    g.nop(1)
    for k in range(52, 62):
        e(f"v_sub_f32 v{k}, v{k}, v62")
        rnd(k, k)
        e(f"v_mul_f32 v{k}, v{k}, v63")
        rnd(k, k)
    if lds_off is not None:
        e("v_lshlrev_b32 v5, 3, v1")
        for r in range(5):
            e(f"ds_write_b64 v5, v[{52+2*r}:{53+2*r}] offset:{lds_off + 512*r}")

if "streamonly" not in OPTS:
    e("s_cmp_eq_u32 s70, 0")
    e("s_cbranch_scc1 L_wave_q")
    e("s_cmp_eq_u32 s70, 1")
    e("s_cbranch_scc1 L_wave_h")
g.vm = []
e("s_barrier")
issued[0] = 0
INIT = NSLOT
for o in OPTS:
    if o.startswith("init"):
        INIT = int(o[4:])
pacing[0] = True
issue(INIT)
lds_prefetch()
pacing[0] = False
if "nobar" not in OPTS:
    e("s_barrier")
issue(NSLOT - INIT)
common_vm = list(g.vm)
e("s_branch L_join")

g.lab("L_wave_q")
if "noprio" not in OPTS:
    e("s_setprio 3")
g.vm = []
x_loads()
e("s_mul_i32 s71, s69, 80")
e("v_add_u32 v4, s71, v7")
e("v_mov_b32 v9, 12288")
e("v_mul_lo_u32 v4, v4, v9")
e("v_mul_u32_u24 v6, 12, v8")
e("v_add_u32 v4, v4, v6")
e("s_mul_i32 s72, s68, 384")
e("v_add_u32 v4, s72, v4")
e("s_mov_b32 s72, 0")
for i in range(40):
    r = 64 + 4 * i
    g.vmem(f"buffer_load_dwordx3 v[{r}:{r+2}], v4, s[40:43], s72 offen", f"wq{i//10}")
    if i != 39:
        e("s_add_u32 s72, s72, 24576")
e("s_lshl_b32 s72, s68, 3")
e("v_mov_b32 v9, s72")
e("v_mov_b32 v10, s86")
e("v_mov_b32 v11, 0")
set_exec("1", "0")
g.vmem("global_atomic_cmpswap v12, v9, v[10:11], s[26:27] sc0 sc1", "nonce")
full_exec()
e("s_barrier")
stamp(5, True)
g.wait_tag("x")
stamp(6, True)
x_unpack()
layernorm(XN_OFF)
e("s_waitcnt lgkmcnt(0)")
stamp(1)
for k in range(56, 62):
    e(f"v_mov_b32 v{k}, 0")
e("v_lshrrev_b32 v5, 5, v1")
e("v_add_u32 v5, s71, v5")
e("v_lshlrev_b32 v5, 2, v5")
for i in range(40):
    e(f"ds_read_b32 v{64+4*i+3}, v5 offset:{XN_OFF + 8*i}")
e("s_waitcnt lgkmcnt(0)")
for i in range(40):
    if i % 10 == 0:
        g.wait_tag(f"wq{i//10}")
    r = 64 + 4 * i
    e(f"v_lshrrev_b32 v14, 16, v{r+3}")
    for d in range(3):
        e(f"v_dot2_f32_bf16 v{56+2*d}, v{r+d}, v14, v{56+2*d}")
        e(f"v_dot2_f32_bf16 v{57+2*d}, v{r+d}, v{r+3}, v{57+2*d}")
g.nop(3)
e(f"ds_write_b64 v13, v[56:57] offset:{QPART_OFF}")
e(f"ds_write_b64 v13, v[58:59] offset:{QPART_OFF+8}")
e(f"ds_write_b64 v13, v[60:61] offset:{QPART_OFF+16}")
e("v_mul_u32_u24 v5, 12, v1")
e("s_waitcnt lgkmcnt(0)")
for d in range(3):
    e(f"ds_read_b32 v{16+d}, v5 offset:{QPART_OFF + 4*d}")
    e(f"ds_read_b32 v{20+d}, v5 offset:{QPART_OFF + 768 + 4*d}")
g.wait_tag("nonce")
e("v_readfirstlane_b32 s87, v12")
g.nop(3)
e("s_cmp_eq_u32 s87, 0")
e("s_cselect_b32 s86, s86, s87")
e("s_waitcnt lgkmcnt(0)")
for d in range(3):
    e(f"v_add_f32 v{16+d}, v{16+d}, v{20+d}")
e("v_mov_b32 v19, s86")
e("s_lshl_b32 s72, s68, 3")
e("s_add_u32 s72, s72, s69")
e("s_lshl_b32 s72, s72, 10")
e("v_lshlrev_b32 v9, 4, v1")
e("v_add_u32 v5, s72, v9")
e(f"global_store_dwordx4 v5, v[16:19], s[28:29] offset:{WS_Q} sc1")
e("v_mov_b32 v5, 0")
e("v_mov_b32 v6, s86")
e(f"ds_write_b32 v5, v6 offset:{NONCE_OFF}")
stamp(2)
e("s_lshl_b32 s72, s68, 13")
e("v_add_u32 v9, s72, v9")
e("s_mov_b32 s74, 0")
g.lab("L_qg")
for cc in range(8):
    if cc == 4:
        e("v_add_u32 v10, 4096, v9")
    a_ = "v9" if cc < 4 else "v10"
    e(f"global_load_dwordx4 v[{64+4*cc}:{67+4*cc}], {a_}, s[28:29] offset:{WS_Q + 1024*(cc%4)} sc1")
e("s_waitcnt vmcnt(0)")
e("v_cmp_ne_u32 vcc, s86, v67")
for cc in range(1, 8):
    e(f"v_cmp_ne_u32 s[78:79], s86, v{67+4*cc}")
    g.nop(1)
    e("s_or_b64 vcc, vcc, s[78:79]")
e("s_add_u32 s74, s74, 1")
g.nop(4)
e("s_cbranch_vccz L_qg_done")
e("s_cmp_ge_u32 s74, 0x40000")
e("s_cbranch_scc1 L_qg_done")
e("s_branch L_qg")
g.lab("L_qg_done")
for d in range(3):
    for st in (4, 2, 1):
        for k in range(st):
            e(f"v_add_f32 v{64+4*k+d}, v{64+4*k+d}, v{64+4*(k+st)+d}")
e("v_cvt_pk_bf16_f32 v64, v64, v64")
e("v_cvt_pk_bf16_f32 v65, v65, v65")
e("v_cvt_pk_bf16_f32 v66, v66, v66")
e("v_mul_u32_u24 v5, 6, v1")
e(f"ds_write_b16 v5, v64 offset:{QBF_OFF}")
e(f"ds_write_b16 v5, v65 offset:{QBF_OFF+2}")
e(f"ds_write_b16 v5, v66 offset:{QBF_OFF+4}")
e("s_waitcnt lgkmcnt(0)")
e("s_branch L_late_stream")

g.lab("L_wave_h")
g.vm = []
x_loads()
e("v_mul_u32_u24 v6, 3072, v1")
e("s_mul_i32 s72, s30, 12")
e("v_add_u32 v6, s72, v6")
e("s_mov_b32 s72, 0")
for r in range(10):
    g.vmem(f"buffer_load_dwordx3 v[{64+4*r}:{66+4*r}], v6, s[48:51], s72 offen", "w1")
    if r != 9:
        e(f"s_add_u32 s72, s72, {64*3072}")
e("s_mul_i32 s72, s30, 6")
e("v_add_u32 v6, s72, v1")
e("v_lshlrev_b32 v6, 1, v6")
g.vmem("buffer_load_ushort v15, v6, s[60:63], 0 offen", "b1")
e("s_barrier")
g.wait_tag("x")
x_unpack()
layernorm(None)
layernorm(Y_OFF)
e("s_waitcnt lgkmcnt(0)")
e("v_lshlrev_b32 v5, 2, v1")
for r in range(10):
    e(f"ds_read_b32 v{64+4*r+3}, v5 offset:{Y_OFF + 256*r}")
for k in range(16, 22):
    e(f"v_mov_b32 v{k}, 0")
g.wait_tag("b1")
e("s_waitcnt lgkmcnt(0)")
for r in range(10):
    rr = 64 + 4 * r
    e(f"v_lshrrev_b32 v14, 16, v{rr+3}")
    for d in range(3):
        e(f"v_dot2_f32_bf16 v{16+2*d}, v{rr+d}, v14, v{16+2*d}")
        e(f"v_dot2_f32_bf16 v{17+2*d}, v{rr+d}, v{rr+3}, v{17+2*d}")
g.nop(4)
dpp_reduce("v_add_f32", list(range(16, 22)))
e("v_mov_b32 v5, 0")
set_exec("0", "0x80000000")
e(f"ds_write_b64 v5, v[16:17] offset:{HPART_OFF}")
e(f"ds_write_b64 v5, v[18:19] offset:{HPART_OFF+8}")
e(f"ds_write_b64 v5, v[20:21] offset:{HPART_OFF+16}")
set_exec("0x3f", "0")
e("v_lshlrev_b32 v5, 2, v1")
e("s_waitcnt lgkmcnt(0)")
e(f"ds_read_b32 v40, v5 offset:{HPART_OFF}")
e("s_waitcnt lgkmcnt(0)")
rnd(40, 40)
e("v_lshlrev_b32 v41, 16, v15")
e("v_add_f32 v40, v40, v41")
rnd(40, 40)
e("v_mul_f32 v41, v40, v40")
e(f"v_mov_b32 v42, {f32(0.044715)}")
e("v_fma_f32 v41, v41, v42, 1.0")
e("v_mul_f32 v41, v41, v40")
e(f"v_mul_f32 v41, {f32(2.0 * math.sqrt(2.0 / math.pi) * 1.4426950408889634)}, v41")
e("v_exp_f32 v41, v41")
g.nop(1)
e("v_add_f32 v41, 1.0, v41")
e("v_rcp_f32 v41, v41")
g.nop(1)
e("v_fma_f32 v40, -v40, v41, v40")
rnd(40, 40)
e(f"ds_write_b32 v5, v40 offset:{H_OFF}")
full_exec()
e("s_waitcnt vmcnt(0) lgkmcnt(0)")
g.vm = []
issued[0] = 0
pacing[0] = True
issue(INIT)
lds_prefetch()
pacing[0] = False
e("s_barrier")
issue(NSLOT - INIT)
assert g.vm == common_vm
e("s_branch L_join")
g.lab("L_late_stream")
e("s_barrier")
e("s_setprio 0")
g.vm = []
issued[0] = 0
issue(INIT)
lds_prefetch()
issue(NSLOT - INIT)
assert g.vm == common_vm
g.lab("L_join")
stamp(3)
e("v_mov_b32 v5, 0")
e(f"ds_read_b32 v6, v5 offset:{NONCE_OFF}")
e("v_lshrrev_b32 v5, 4, v1")
e("v_lshlrev_b32 v5, 1, v5")
e("v_and_b32 v7, 1, v1")
e("v_add_u32 v5, v5, v7")
e("v_lshlrev_b32 v5, 4, v5")
for j in range(3):
    e(f"ds_read_b128 v[{16+4*j}:{19+4*j}], v5 offset:{QBF_OFF + 128*j}")
e("v_lshrrev_b32 v5, 5, v1")
e("v_lshlrev_b32 v5, 2, v5")
for k in range(56, 62):
    e(f"v_mov_b32 v{k}, 0")
e("s_waitcnt lgkmcnt(0)")
e("v_readfirstlane_b32 s86, v6")
g.nop(3)
if NLDS:
    e(f"s_mul_i32 s74, s70, {NLDS*1024}")
    e(f"s_add_u32 s74, s74, {LBUF_OFF}")
    e("v_lshlrev_b32 v4, 4, v1")
    e("v_add_u32 v4, s74, v4")

def qk(tile):
    for half in range(2):
        for bb in range(4):
            b = 4 * half + bb
            if tile == 1 and 3 * b + 2 < NLDS:
                if lds_pending[0]:
                    e("s_waitcnt lgkmcnt(0)")
                    lds_pending[0] = False
            else:
                if tile == 1 and lds_pending[0]:
                    e("s_waitcnt lgkmcnt(0)")
                    lds_pending[0] = False
                g.wait_tag(f"K{tile}_{3*b+2}")
            for j in range(3):
                r = slot_reg("K", tile, 3 * b + j)
                c = "0" if j == 0 else f"v[{40+4*bb}:{43+4*bb}]"
                e(f"v_mfma_f32_16x16x32_bf16 v[{40+4*bb}:{43+4*bb}], v[{16+4*j}:{19+4*j}], v[{r}:{r+3}], {c}")
            issue(3)
        g.nop(10)
        for bb in range(4):
            e(f"v_cndmask_b32 v{40+4*bb}, v{40+4*bb}, v{41+4*bb}, s[20:21]")
        g.nop(1)
        for bb in range(4):
            e(f"v_add_f32_dpp v{41+4*bb}, v{40+4*bb}, v{40+4*bb} row_ror:8 row_mask:0xf bank_mask:0xf")
        for bb in range(4):
            b = 4 * half + bb
            if b == 0:
                e("v_mov_b32 v62, v41")
            else:
                e(f"v_cndmask_b32 v62, v62, v{41+4*bb}, s[{4+2*b}:{5+2*b}]")
    rnd(62, 62)
    e(f"v_mul_f32 v62, {SCALE}, v62")
    rnd(62, 62)
    e("v_mov_b32 v63, v62")
    reduce_to_sgpr("v_max_f32", 63, 76)
def softmax(tile):
    if tile == 0:
        e("s_mov_b32 s77, s76")
        e("v_subrev_f32 v62, s77, v62")
        e(f"v_mul_f32 v62, {LOG2E}, v62")
        e("v_exp_f32 v62, v62")
        g.nop(1)
        e("v_mov_b32 v12, v62")
    else:
        e("v_mov_b32 v6, s76")
        e("v_max_f32 v6, s77, v6")
        g.nop(1)
        e("v_readfirstlane_b32 s78, v6")
        e("v_sub_f32 v6, s77, v6")
        e(f"v_mul_f32 v6, {LOG2E}, v6")
        e("v_exp_f32 v6, v6")
        e("s_mov_b32 s77, s78")
        g.nop(2)
        e("v_subrev_f32 v62, s77, v62")
        e(f"v_mul_f32 v62, {LOG2E}, v62")
        e("v_exp_f32 v62, v62")
        for k in range(56, 62):
            e(f"v_mul_f32 v{k}, v{k}, v6")
        e("v_fma_f32 v12, v12, v6, v62")
    rnd(62, 62)
def pv(tile):
    for i in range(32):
        if "nocomp" in OPTS:
            break
        e(f"ds_bpermute_b32 v{slot_reg('V', tile, i)+3}, v5, v62 offset:{8*i}")
        if i % 8 == 7:
            e("s_waitcnt lgkmcnt(0)")
    for i in range(32):
        r = slot_reg("V", tile, i)
        if i % 2 == 0:
            g.wait_tag(f"V{tile}_{i+1}")
        if "nocomp" not in OPTS:
            e(f"v_lshrrev_b32 v14, 16, v{r+3}")
            for d in range(3):
                e(f"v_dot2_f32_bf16 v{56+2*d}, v{r+d}, v14, v{56+2*d}")
                e(f"v_dot2_f32_bf16 v{57+2*d}, v{r+d}, v{r+3}, v{57+2*d}")
        if i % 2 == 1:
            issue(2)

qk(0)
stamp(4)
softmax(0)
pv(0)
stamp(5)
qk(1)
stamp(6)
e("v_mov_b32 v7, 52429")
e("v_mul_u32_u24 v7, v0, v7")
e("v_lshrrev_b32 v7, 22, v7")
e("v_mul_u32_u24 v8, 80, v7")
e("v_sub_u32 v8, v0, v8")
e("v_lshlrev_b32 v9, 2, v7")
e("s_mul_i32 s72, s68, 192")
e("s_mul_i32 s74, s69, 24")
e("s_add_u32 s72, s72, s74")
e("v_add_u32 v9, s72, v9")
e("v_mul_u32_u24 v9, 1280, v9")
e("v_lshlrev_b32 v10, 4, v8")
e("v_add_u32 v9, v9, v10")
for i in range(4):
    g.vmem(f"buffer_load_dwordx4 v[{144+4*i}:{147+4*i}], v9, s[44:47], 0 offen offset:{1280*i}", "wo")
e("s_mul_i32 s72, s30, 6")
e("v_add_u32 v9, s72, v7")
e("v_mul_u32_u24 v9, 1280, v9")
e("v_add_u32 v9, v9, v10")
g.vmem("buffer_load_dwordx4 v[140:143], v9, s[52:55], 0 offen", "w2")
e("v_mov_b32 v138, v7")
e("v_mov_b32 v139, v8")
if LINMAP:
    e("v_lshrrev_b32 v9, 3, v0")
    e("v_and_b32 v9, 31, v9")
else:
    e("v_and_b32 v9, 7, v0")
    e("v_lshlrev_b32 v9, 2, v9")
    e("v_lshrrev_b32 v10, 3, v0")
    e("v_and_b32 v10, 3, v10")
    e("v_add_u32 v9, v9, v10")
e("v_lshlrev_b32 v9, 3, v9")
e("v_mov_b32 v135, v9")
g.vmem("global_load_dword v137, v9, s[26:27] sc1", "nonces")
softmax(1)
pv(1)
stamp(7)
if "streamonly" in OPTS:
    e("s_branch L_fin")

reduce_to_sgpr("v_add_f32", 12, 79)
e(f"ds_write_b64 v13, v[56:57] offset:{QPART_OFF}")
e(f"ds_write_b64 v13, v[58:59] offset:{QPART_OFF+8}")
e(f"ds_write_b64 v13, v[60:61] offset:{QPART_OFF+16}")
e("v_mov_b32 v6, s77")
e("v_mov_b32 v7, s79")
e("s_lshl_b32 s72, s70, 3")
e("v_mov_b32 v5, s72")
set_exec("1", "0")
e(f"ds_write_b64 v5, v[6:7] offset:{ML_OFF}")
full_exec()
e("s_waitcnt lgkmcnt(0)")
e("s_barrier")
e("s_cmp_ge_u32 s70, 3")
e("s_cbranch_scc1 L_comb_done")
e("v_mov_b32 v5, 0")
for w in range(8):
    e(f"ds_read_b64 v[{40+2*w}:{41+2*w}], v5 offset:{ML_OFF + 8*w}")
e("v_lshlrev_b32 v5, 2, v0")
for k in range(16):
    e(f"ds_read_b32 v{64+k}, v5 offset:{QPART_OFF + 768*k}")
e("s_waitcnt lgkmcnt(0)")
e("v_max_f32 v6, v40, v42")
for w in range(2, 8):
    e(f"v_max_f32 v6, v6, v{40+2*w}")
for w in range(8):
    e(f"v_sub_f32 v{40+2*w}, v{40+2*w}, v6")
    e(f"v_mul_f32 v{40+2*w}, {LOG2E}, v{40+2*w}")
    e(f"v_exp_f32 v{40+2*w}, v{40+2*w}")
g.nop(1)
e("v_mul_f32 v7, v40, v41")
for w in range(1, 8):
    e(f"v_fma_f32 v7, v{40+2*w}, v{41+2*w}, v7")
for w in range(8):
    e(f"v_add_f32 v{64+2*w}, v{64+2*w}, v{65+2*w}")
e("v_mul_f32 v8, v40, v64")
for w in range(1, 8):
    e(f"v_fma_f32 v8, v{40+2*w}, v{64+2*w}, v8")
e(f"ds_write_b32 v5, v8 offset:{OSUM_OFF}")
e("s_cmp_lg_u32 s70, 0")
e("s_cbranch_scc1 L_comb_done")
set_exec("1", "0")
e(f"ds_write_b64 v5, v[6:7] offset:{OSUM_OFF+768}")
full_exec()
g.lab("L_comb_done")
e("s_waitcnt lgkmcnt(0)")
e("s_barrier")
e("s_lshl_b32 s72, s68, 3")
e("s_add_u32 s72, s72, s69")
e("s_lshl_b32 s72, s72, 11")
e(f"s_add_u32 s72, s72, {WS_O}")
e("s_cmp_gt_u32 s70, 1")
e("s_cbranch_scc1 L_opub_done")
e("v_mul_u32_u24 v5, 12, v0")
e(f"ds_read_b32 v40, v5 offset:{OSUM_OFF}")
e(f"ds_read_b32 v41, v5 offset:{OSUM_OFF+4}")
e(f"ds_read_b32 v42, v5 offset:{OSUM_OFF+8}")
e("v_mov_b32 v43, s86")
e("v_lshlrev_b32 v6, 4, v0")
e("v_add_u32 v6, s72, v6")
e("s_cmp_eq_u32 s70, 0")
e("s_cbranch_scc1 L_opub_st")
set_exec("1", "0")
g.lab("L_opub_st")
e("s_waitcnt lgkmcnt(0)")
e("global_store_dwordx4 v6, v[40:43], s[28:29] sc1")
full_exec()
g.lab("L_opub_done")
e("s_cmp_gt_u32 s70, 1")
e("s_cbranch_scc1 L_og_done")
e("s_lshl_b32 s72, s68, 14")
e(f"s_add_u32 s72, s72, {WS_O}")
e("s_cmp_eq_u32 s70, 1")
e("s_cbranch_scc1 L_og_ml")
e("v_lshrrev_b32 v6, 3, v1")
e("v_lshlrev_b32 v9, 11, v6")
e("v_and_b32 v7, 7, v1")
e("s_lshl_b32 s74, s69, 3")
e("v_add_u32 v8, s74, v7")
e("v_lshlrev_b32 v8, 4, v8")
e("v_add_u32 v9, v9, v8")
e("v_add_u32 v9, s72, v9")
poll_granule(40, 9, 0, "s86")
e("v_mul_u32_u24 v5, 96, v6")
e("v_mul_u32_u24 v7, 12, v7")
e("v_add_u32 v5, v5, v7")
e(f"ds_write_b32 v5, v40 offset:{OG_OFF}")
e(f"ds_write_b32 v5, v41 offset:{OG_OFF+4}")
e(f"ds_write_b32 v5, v42 offset:{OG_OFF+8}")
e("s_branch L_og_done")
g.lab("L_og_ml")
set_exec("0xff", "0")
e("v_lshlrev_b32 v9, 11, v1")
e("v_add_u32 v9, s72, v9")
poll_granule(40, 9, 1024, "s86")
e("v_lshlrev_b32 v5, 3, v1")
e(f"ds_write_b64 v5, v[40:41] offset:{OG_OFF+768}")
full_exec()
g.lab("L_og_done")
e("s_waitcnt lgkmcnt(0)")
e("s_barrier")
e("s_cmp_lg_u32 s70, 0")
e("s_cbranch_scc1 L_ofin_done")
set_exec("0xffffff", "0")
e("v_mov_b32 v5, 0")
for w in range(8):
    e(f"ds_read_b64 v[{40+2*w}:{41+2*w}], v5 offset:{OG_OFF + 768 + 8*w}")
e("v_lshlrev_b32 v5, 2, v1")
for w in range(8):
    e(f"ds_read_b32 v{64+w}, v5 offset:{OG_OFF + 96*w}")
e("s_waitcnt lgkmcnt(0)")
e("v_max_f32 v6, v40, v42")
for w in range(2, 8):
    e(f"v_max_f32 v6, v6, v{40+2*w}")
for w in range(8):
    e(f"v_sub_f32 v{40+2*w}, v{40+2*w}, v6")
    e(f"v_mul_f32 v{40+2*w}, {LOG2E}, v{40+2*w}")
    e(f"v_exp_f32 v{40+2*w}, v{40+2*w}")
g.nop(1)
e("v_mul_f32 v7, v40, v41")
for w in range(1, 8):
    e(f"v_fma_f32 v7, v{40+2*w}, v{41+2*w}, v7")
e("v_mul_f32 v8, v40, v64")
for w in range(1, 8):
    e(f"v_fma_f32 v8, v{40+2*w}, v{64+w}, v8")
e("v_rcp_f32 v7, v7")
g.nop(1)
e("v_mul_f32 v8, v8, v7")
rnd(8, 8)
e(f"ds_write_b32 v5, v8 offset:{OFIN_OFF}")
full_exec()
e("s_waitcnt lgkmcnt(0)")
g.lab("L_ofin_done")
e("s_barrier")
stamp(8)
e("v_lshlrev_b32 v5, 4, v138")
e(f"ds_read_b128 v[6:9], v5 offset:{OFIN_OFF}")
e("v_lshlrev_b32 v5, 2, v138")
e(f"ds_read_b32 v10, v5 offset:{H_OFF}")
for k in range(40, 56):
    e(f"v_mov_b32 v{k}, 0")
e("s_waitcnt vmcnt(0) lgkmcnt(0)")
for i in range(4):
    e(f"v_lshrrev_b32 v14, 16, v{6+i}")
    for d in range(4):
        e(f"v_dot2_f32_bf16 v{40+2*d}, v{144+4*i+d}, v14, v{40+2*d}")
        e(f"v_dot2_f32_bf16 v{41+2*d}, v{144+4*i+d}, v{6+i}, v{41+2*d}")
e("v_lshrrev_b32 v14, 16, v10")
for d in range(4):
    e(f"v_dot2_f32_bf16 v{48+2*d}, v{140+d}, v14, v{48+2*d}")
    e(f"v_dot2_f32_bf16 v{49+2*d}, v{140+d}, v10, v{49+2*d}")
e("v_mul_u32_u24 v5, 2560, v138")
e("v_lshlrev_b32 v6, 5, v139")
e("v_add_u32 v5, v5, v6")
e("v_cmp_gt_u32 vcc, 480, v0")
e("s_and_saveexec_b64 s[78:79], vcc")
g.nop(2)
e(f"ds_write_b128 v5, v[40:43] offset:{S2_OFF}")
e(f"ds_write_b128 v5, v[44:47] offset:{S2_OFF+16}")
e(f"ds_write_b128 v5, v[48:51] offset:{S2_OFF+15360}")
e(f"ds_write_b128 v5, v[52:55] offset:{S2_OFF+15360+16}")
full_exec()
e("s_waitcnt lgkmcnt(0)")
e("s_barrier")
e("v_cmp_le_u32 vcc, 214, v0")
e("v_subrev_u32 v6, 214, v0")
g.nop(1)
e("v_cndmask_b32 v6, v0, v6, vcc")
e("v_cndmask_b32 v7, 0, 1, vcc")
e("v_mul_u32_u24 v5, 15360, v7")
e("v_mul_u32_u24 v8, 12, v6")
e("v_add_u32 v5, v5, v8")
e("v_cmp_gt_u32 vcc, 428, v0")
e("s_and_saveexec_b64 s[78:79], vcc")
e("s_cbranch_execz L_s2_done")
for rg in range(6):
    for k in range(3):
        e(f"ds_read_b32 v{40+4*rg+k}, v5 offset:{S2_OFF + 2560*rg + 4*k}")
e("s_waitcnt lgkmcnt(0)")
for rg in range(1, 6):
    for k in range(3):
        e(f"v_add_f32 v{40+k}, v{40+k}, v{40+4*rg+k}")
e("v_mov_b32 v43, s86")
e("v_mul_u32_u24 v9, 3424, v7")
e("v_lshlrev_b32 v8, 4, v6")
e("v_add_u32 v9, v9, v8")
e("s_lshl_b32 s72, s2, 13")
e(f"s_add_u32 s72, s72, {WS_S}")
e("v_add_u32 v9, s72, v9")
e("global_store_dwordx4 v9, v[40:43], s[28:29] sc1")
g.lab("L_s2_done")
full_exec()
e("s_cmp_ge_u32 s2, 214")
e("s_cbranch_scc1 L_fin")
e("v_lshrrev_b32 v7, 8, v0")
e("v_and_b32 v6, 255, v0")
e("v_lshlrev_b32 v6, 13, v6")
e("v_mul_u32_u24 v9, 3424, v7")
e("v_add_u32 v9, v9, v6")
e("s_lshl_b32 s72, s2, 4")
e(f"s_add_u32 s72, s72, {WS_S}")
e("v_add_u32 v9, s72, v9")
e("s_mul_i32 s72, s2, 3")
e("v_add_u32 v5, s72, v1")
e("v_lshlrev_b32 v5, 1, v5")
e("buffer_load_ushort v44, v5, s[56:59], 0 offen")
e("buffer_load_ushort v45, v5, s[64:67], 0 offen")
e("s_mov_b32 s74, 0")
g.lab("L_fpoll")
e("global_load_dwordx4 v[40:43], v9, s[28:29] sc1")
e("s_waitcnt vmcnt(0)")
e("v_cmp_ne_u32 vcc, v137, v43")
e("v_cmp_eq_u32 s[78:79], 0, v137")
e("s_add_u32 s74, s74, 1")
g.nop(4)
e("s_or_b64 vcc, vcc, s[78:79]")
g.nop(4)
e("s_cbranch_vccz L_fpoll_done")
e("s_cmp_ge_u32 s74, 0x40000")
e("s_cbranch_scc1 L_fpoll_done")
if "nosleep" not in OPTS:
    e("s_sleep 1")
e("global_load_dword v137, v135, s[26:27] sc1")
e("s_branch L_fpoll")
g.lab("L_fpoll_done")
stamp(9)
dpp_reduce("v_add_f32", [40, 41, 42])
e("s_lshl_b32 s72, s70, 4")
e("v_mov_b32 v6, s72")
set_exec("0", "0x80000000")
e(f"ds_write_b128 v6, v[40:43] offset:{RED_OFF}")
full_exec()
e("s_waitcnt lgkmcnt(0)")
e("s_barrier")
e("s_cmp_lg_u32 s70, 0")
e("s_cbranch_scc1 L_fin")
set_exec("0x7", "0")
e("v_lshlrev_b32 v6, 2, v1")
for w in range(8):
    e(f"ds_read_b32 v{48+w}, v6 offset:{RED_OFF + 16*w}")
e("s_waitcnt lgkmcnt(0)")
e("v_add_f32 v48, v48, v49")
e("v_add_f32 v50, v50, v51")
e("v_add_f32 v48, v48, v50")
e("v_add_f32 v52, v52, v53")
e("v_add_f32 v54, v54, v55")
e("v_add_f32 v52, v52, v54")
rnd(48, 48)
rnd(52, 52)
e("v_lshlrev_b32 v45, 16, v45")
e("v_add_f32 v52, v52, v45")
rnd(52, 52)
e(f"v_mul_f32 v53, {f32(-1.4426950408889634)}, v52")
e("v_exp_f32 v53, v53")
g.nop(1)
e("v_add_f32 v53, 1.0, v53")
e("v_rcp_f32 v53, v53")
g.nop(1)
e("v_mul_f32 v52, v52, v53")
rnd(52, 52)
e("v_mul_f32 v48, v48, v52")
rnd(48, 48)
e("v_lshlrev_b32 v44, 16, v44")
e("v_add_f32 v48, v44, v48")
e("v_cvt_pk_bf16_f32 v48, v48, v48")
e("v_cmp_gt_u32 vcc, 1280, v5")
e("s_and_saveexec_b64 s[78:79], vcc")
e("s_cbranch_execz L_nostore")
e("global_store_short v5, v48, s[24:25]")
g.lab("L_nostore")
full_exec()
g.lab("L_fin")
if STAMPS:
    stamp(10)
    e("s_lshl_b32 s72, s2, 3")
    e("s_add_u32 s72, s72, s70")
    e("s_lshl_b32 s72, s72, 6")
    e(f"s_add_u32 s72, s72, {WS_STAMP}")
    e("v_mov_b32 v5, s72")
    set_exec("1", "0")
    for i in range(11):
        e(f"v_mov_b32 v6, s{88+i}")
        e(f"global_store_dword v5, v6, s[28:29] offset:{4*i}")
        e("s_waitcnt vmcnt(0)")
    full_exec()
g.lab("L_end")
e("s_endpgm")

hdr = open(f"cdna_kernels/{NAME}.s.ref").read().split("; Override launch")[0]
txt = hdr + f"""; Override launch geometry by editing the next line (default: block=256,
; grid=ceil(out_elems/256), lds=0). Harness parses it; keep it on one line.
; @launch grid=(256,1,1) block=(512,1,1) lds={LDS_BYTES}
.amdgcn_target "amdgcn-amd-amdhsa--gfx950"
.text
.globl {NAME}_kernel
.p2align 8
.type {NAME}_kernel,@function
{NAME}_kernel:
""" + "\n".join(g.L) + f"""
.section .rodata,"a"
.p2align 6
.amdhsa_kernel {NAME}_kernel
  .amdhsa_next_free_vgpr 256
  .amdhsa_next_free_sgpr 102
  .amdhsa_accum_offset 256
  .amdhsa_group_segment_fixed_size 0
  .amdhsa_kernarg_size 104
  .amdhsa_user_sgpr_count 2
  .amdhsa_user_sgpr_kernarg_segment_ptr 1
  .amdhsa_system_sgpr_workgroup_id_x 1
.end_amdhsa_kernel
"""
open(OUT, "w").write(txt)
print("wrote", OUT, len(g.L), "lines")
```

```python
import struct, sys, math

NAME = "recurrent_scan__gqa_block_cached__mixer_channel_mlp__decode"
OUT = sys.argv[1] if len(sys.argv) > 1 else f"cdna_kernels/{NAME}.s"
OPTS = set(sys.argv[2:])
NT = "nont" not in OPTS
STAMPS = "stamps" in OPTS

def f32(x):
    return "0x%08x" % struct.unpack("<I", struct.pack("<f", x))[0]

LOG2E = f32(1.4426950408889634)
SCALE = f32(192 ** -0.5)
INV640 = f32(1.0 / 640.0)
EPS = f32(1e-5)

XN_OFF = 0
Y_OFF = 2560
QPART_OFF = 5120
HPART_OFF = 17408
QBF_OFF = 17664
H_OFF = 18048
ML_OFF = 18080
OFIN_OFF = 18144
RED_OFF = 18240
NONCE_OFF = 18400
OSUM_OFF = 18432
OG_OFF = 19456
S2_OFF = 20480
LBUF_OFF = 20480
NLDS = 0
for o in OPTS:
    if o.startswith("lds"):
        NLDS = int(o[3:])
LDS_BYTES = max(S2_OFF + 2 * 6 * 2560 + 64, LBUF_OFF + 8 * NLDS * 1024)
WS_Q = 0
WS_O = 0x40000
WS_S = 0x100000
WS_STAMP = 0x400000

class G:
    def __init__(s):
        s.L = []
        s.vm = []
    def e(s, t):
        s.L.append("    " + t)
    def lab(s, t):
        s.L.append(t + ":")
    def vmem(s, t, tag):
        s.e(t)
        s.vm.append(tag)
    def wait_tag(s, tag):
        idx = max(i for i, t in enumerate(s.vm) if t == tag)
        n = min(len(s.vm) - 1 - idx, 63)
        s.e(f"s_waitcnt vmcnt({n})")
    def nop(s, n):
        while n > 0:
            k = min(n, 16)
            s.e(f"s_nop {k-1}")
            n -= k

g = G()
e = g.e

def rnd(dst, src):
    e(f"v_cvt_pk_bf16_f32 v{dst}, v{src}, v{src}")
    e(f"v_and_b32 v{dst}, 0xffff0000, v{dst}")

def dpp_reduce(op, regs):
    steps = ["row_shr:1 row_mask:0xf bank_mask:0xf", "row_shr:2 row_mask:0xf bank_mask:0xf",
             "row_shr:4 row_mask:0xf bank_mask:0xf", "row_shr:8 row_mask:0xf bank_mask:0xf",
             "row_bcast:15 row_mask:0xa bank_mask:0xf", "row_bcast:31 row_mask:0xc bank_mask:0xf"]
    for st in steps:
        if len(regs) < 3:
            g.nop(2)
        for r in regs:
            e(f"{op}_dpp v{r}, v{r}, v{r} {st}")

def reduce_to_sgpr(op, r, sd):
    dpp_reduce(op, [r])
    g.nop(1)
    e(f"v_readlane_b32 s{sd}, v{r}, 63")
    g.nop(2)

def set_exec(lo, hi):
    e(f"s_mov_b32 exec_lo, {lo}")
    e(f"s_mov_b32 exec_hi, {hi}")

def full_exec():
    e("s_mov_b64 exec, -1")

ntf = " nt" if NT else ""
EARLY = "early" in OPTS
def stamp(i, early=False):
    if EARLY and i in (4, 5, 6) and not early:
        return
    if early and not EARLY:
        return
    if STAMPS:
        e("s_memrealtime s[100:101]")
        e("s_waitcnt lgkmcnt(0)")
        e(f"s_mov_b32 s{88+i}, s100")

_poll_id = [0]
def poll_granule(vdst, vaddr, ws_off, tag_src):
    n = _poll_id[0]; _poll_id[0] += 1
    e("s_mov_b32 s74, 0")
    g.lab(f"L_poll{n}")
    e(f"global_load_dwordx4 v[{vdst}:{vdst+3}], v{vaddr}, s[28:29] offset:{ws_off} sc1")
    e("s_waitcnt vmcnt(0)")
    e(f"v_cmp_ne_u32 vcc, {tag_src}, v{vdst+3}")
    e("s_add_u32 s74, s74, 1")
    g.nop(4)
    e(f"s_cbranch_vccz L_poll{n}_done")
    e("s_cmp_ge_u32 s74, 0x40000")
    e(f"s_cbranch_scc1 L_poll{n}_done")
    if "nosleep" not in OPTS:
        e("s_sleep 1")
    e(f"s_branch L_poll{n}")
    g.lab(f"L_poll{n}_done")

e("s_cmp_ge_u32 s2, 256")
e("s_cbranch_scc1 L_end")
stamp(0)
e("s_load_dwordx16 s[4:19], s[0:1], 0")
e("s_load_dwordx8 s[20:27], s[0:1], 64")
e("s_load_dwordx2 s[28:29], s[0:1], 96")
e("s_memrealtime s[86:87]")
e("v_and_b32 v1, 63, v0")
e("v_lshrrev_b32 v5, 6, v0")
g.nop(1)
e("v_readfirstlane_b32 s70, v5")
LINMAP = "linmap" in OPTS
if LINMAP:
    e("s_lshr_b32 s68, s2, 3")
    e("s_and_b32 s69, s2, 7")
else:
    e("s_and_b32 s68, s2, 7")
    e("s_lshl_b32 s68, s68, 2")
    e("s_lshr_b32 s69, s2, 3")
    e("s_and_b32 s69, s69, 3")
    e("s_add_u32 s68, s68, s69")
    e("s_lshr_b32 s69, s2, 5")
e("s_and_b32 s30, s2, 7")
e("s_lshl_b32 s30, s30, 5")
e("s_lshr_b32 s31, s2, 3")
e("s_add_u32 s30, s30, s31")
e("v_and_b32 v6, 7, v1")
e("v_mul_u32_u24 v2, 384, v6")
e("v_lshrrev_b32 v6, 3, v1")
e("v_lshlrev_b32 v6, 4, v6")
e("v_add_u32 v2, v2, v6")
e("v_lshrrev_b32 v7, 5, v1")
e("v_and_b32 v8, 31, v1")
e("v_mul_u32_u24 v3, 384, v7")
e("v_mul_u32_u24 v6, 12, v8")
e("v_add_u32 v3, v3, v6")
e("s_waitcnt lgkmcnt(0)")
def srd(base, ptr, nbytes):
    e(f"s_mov_b32 s{base}, s{ptr}")
    e(f"s_and_b32 s{base+1}, s{ptr+1}, 0xffff")
    e(f"s_mov_b32 s{base+2}, {nbytes}")
    e(f"s_mov_b32 s{base+3}, 0x00020000")
srd(56, 4, 1280)
srd(32, 6, 100663296)
srd(36, 8, 100663296)
srd(40, 10, 7864320)
srd(44, 12, 7864320)
srd(48, 16, 1966080)
srd(60, 18, 3072)
srd(52, 20, 1966080)
srd(64, 22, 1280)
for b in range(8):
    e(f"s_mov_b32 s{4+2*b}, {hex((0xff << (8*b)) & 0xffffffff) if b < 4 else 0}")
    e(f"s_mov_b32 s{5+2*b}, {hex((0xff << (8*(b-4))) & 0xffffffff) if b >= 4 else 0}")
e("s_mov_b32 s20, 0xff00ff00")
e("s_mov_b32 s21, 0xff00ff00")
e("s_mul_i32 s73, s68, 3145728")
e("s_mul_i32 s74, s69, 393216")
e("s_add_u32 s73, s73, s74")
e("s_mul_i32 s74, s70, 49152")
e("s_add_u32 s73, s73, s74")
e("s_or_b32 s86, s86, 1")
e("v_lshrrev_b32 v6, 5, v1")
e("s_lshl_b32 s72, s70, 1")
e("v_add_u32 v6, s72, v6")
e("v_mul_u32_u24 v6, 768, v6")
e("v_mul_u32_u24 v9, 24, v8")
e("v_add_u32 v13, v6, v9")
NSLOT = 48
STREAM = []
for t_ in range(2):
    STREAM += [("K", t_, i) for i in range(24)]
    STREAM += [("V", t_, i) for i in range(32)]
POS = {x: n for n, x in enumerate(STREAM)}
def slot_reg(kind, tile, idx):
    return 64 + 4 * (POS[(kind, tile, idx)] % NSLOT)
issued = [0]
lds_pending = [False]
def lds_prefetch():
    if NLDS == 0:
        return
    e(f"s_mul_i32 s74, s70, {NLDS*1024}")
    e(f"s_add_u32 s74, s74, {LBUF_OFF}")
    for i in range(NLDS):
        b, j = divmod(i, 3)
        e(f"s_add_u32 s72, s73, {24576 + b*3072 + 128*j}")
        e(f"s_add_u32 m0, s74, {1024*i}")
        if pacing[0] and PACE:
            e(f"s_waitcnt vmcnt({PACE-1})")
        else:
            e("s_nop 0")
        g.vmem(f"buffer_load_dwordx4 v2, s[32:35], s72 offen{ntf} lds", "KL")
PACE = 0
for o in OPTS:
    if o.startswith("pace"):
        PACE = int(o[4:])
pacing = [False]
def issue(n):
    for _ in range(n):
        if issued[0] >= len(STREAM):
            return
        if pacing[0] and PACE and len(g.vm) >= PACE:
            e(f"s_waitcnt vmcnt({PACE-1})")
        kind, tile, i = STREAM[issued[0]]
        r = 64 + 4 * (issued[0] % NSLOT)
        issued[0] += 1
        if kind == "K" and tile == 1 and i < NLDS:
            if i == 0:
                g.wait_tag("KL")
            e(f"ds_read_b128 v[{r}:{r+3}], v4 offset:{1024*i}")
            lds_pending[0] = True
        elif kind == "K":
            b, j = divmod(i, 3)
            e(f"s_add_u32 s72, s73, {tile*24576 + b*3072}")
            g.vmem(f"buffer_load_dwordx4 v[{r}:{r+3}], v2, s[32:35], s72 offen offset:{128*j}{ntf}", f"K{tile}_{i}")
        else:
            e(f"s_add_u32 s72, s73, {tile*24576 + i*768}")
            g.vmem(f"buffer_load_dwordx3 v[{r}:{r+2}], v3, s[36:39], s72 offen{ntf}", f"V{tile}_{i}")
def x_loads():
    e("v_lshlrev_b32 v5, 2, v1")
    for r in range(5):
        g.vmem(f"buffer_load_dword v{47+r}, v5, s[56:59], 0 offen offset:{256*r}", "x")
def x_unpack():
    for r in range(5):
        e(f"v_lshlrev_b32 v{52+2*r}, 16, v{47+r}")
        e(f"v_and_b32 v{53+2*r}, 0xffff0000, v{47+r}")
def layernorm(lds_off):
    e("v_add_f32 v43, v52, v53")
    for k in range(54, 62):
        e(f"v_add_f32 v43, v43, v{k}")
    reduce_to_sgpr("v_add_f32", 43, 74)
    e(f"v_mov_b32 v62, {INV640}")
    e("v_mul_f32 v62, s74, v62")
    e("v_sub_f32 v63, v52, v62")
    e("v_mul_f32 v43, v63, v63")
    for k in range(53, 62):
        e(f"v_sub_f32 v63, v{k}, v62")
        e("v_fma_f32 v43, v63, v63, v43")
    reduce_to_sgpr("v_add_f32", 43, 74)
    e(f"v_mov_b32 v63, {INV640}")
    e("v_mul_f32 v63, s74, v63")
    rnd(62, 62)
    rnd(63, 63)
    e(f"v_add_f32 v63, {EPS}, v63")
    rnd(63, 63)
    e("v_sqrt_f32 v63, v63")
    g.nop(1)
    rnd(63, 63)
    e("v_rcp_f32 v63, v63")
    g.nop(1)
    for k in range(52, 62):
        e(f"v_sub_f32 v{k}, v{k}, v62")
        rnd(k, k)
        e(f"v_mul_f32 v{k}, v{k}, v63")
        rnd(k, k)
    if lds_off is not None:
        e("v_lshlrev_b32 v5, 3, v1")
        for r in range(5):
            e(f"ds_write_b64 v5, v[{52+2*r}:{53+2*r}] offset:{lds_off + 512*r}")

if "streamonly" not in OPTS:
    e("s_cmp_eq_u32 s70, 0")
    e("s_cbranch_scc1 L_wave_q")
    e("s_cmp_eq_u32 s70, 1")
    e("s_cbranch_scc1 L_wave_h")
g.vm = []
e("s_barrier")
issued[0] = 0
INIT = NSLOT
for o in OPTS:
    if o.startswith("init"):
        INIT = int(o[4:])
pacing[0] = True
issue(INIT)
lds_prefetch()
pacing[0] = False
if "nobar" not in OPTS:
    e("s_barrier")
issue(NSLOT - INIT)
common_vm = list(g.vm)
e("s_branch L_join")

g.lab("L_wave_q")
if "noprio" not in OPTS:
    e("s_setprio 3")
g.vm = []
x_loads()
e("s_mul_i32 s71, s69, 80")
e("v_add_u32 v4, s71, v7")
e("v_mov_b32 v9, 12288")
e("v_mul_lo_u32 v4, v4, v9")
e("v_mul_u32_u24 v6, 12, v8")
e("v_add_u32 v4, v4, v6")
e("s_mul_i32 s72, s68, 384")
e("v_add_u32 v4, s72, v4")
e("s_mov_b32 s72, 0")
for i in range(40):
    r = 64 + 4 * i
    g.vmem(f"buffer_load_dwordx3 v[{r}:{r+2}], v4, s[40:43], s72 offen", f"wq{i//10}")
    if i != 39:
        e("s_add_u32 s72, s72, 24576")
e("s_lshl_b32 s72, s68, 3")
e("v_mov_b32 v9, s72")
e("v_mov_b32 v10, s86")
e("v_mov_b32 v11, 0")
set_exec("1", "0")
g.vmem("global_atomic_cmpswap v12, v9, v[10:11], s[26:27] sc0 sc1", "nonce")
full_exec()
e("s_barrier")
stamp(5, True)
g.wait_tag("x")
stamp(6, True)
x_unpack()
layernorm(XN_OFF)
e("s_waitcnt lgkmcnt(0)")
stamp(1)
for k in range(56, 62):
    e(f"v_mov_b32 v{k}, 0")
e("v_lshrrev_b32 v5, 5, v1")
e("v_add_u32 v5, s71, v5")
e("v_lshlrev_b32 v5, 2, v5")
for i in range(40):
    e(f"ds_read_b32 v{64+4*i+3}, v5 offset:{XN_OFF + 8*i}")
e("s_waitcnt lgkmcnt(0)")
for i in range(40):
    if i % 10 == 0:
        g.wait_tag(f"wq{i//10}")
    r = 64 + 4 * i
    e(f"v_lshrrev_b32 v14, 16, v{r+3}")
    for d in range(3):
        e(f"v_dot2_f32_bf16 v{56+2*d}, v{r+d}, v14, v{56+2*d}")
        e(f"v_dot2_f32_bf16 v{57+2*d}, v{r+d}, v{r+3}, v{57+2*d}")
g.nop(3)
e(f"ds_write_b64 v13, v[56:57] offset:{QPART_OFF}")
e(f"ds_write_b64 v13, v[58:59] offset:{QPART_OFF+8}")
e(f"ds_write_b64 v13, v[60:61] offset:{QPART_OFF+16}")
e("v_mul_u32_u24 v5, 12, v1")
e("s_waitcnt lgkmcnt(0)")
for d in range(3):
    e(f"ds_read_b32 v{16+d}, v5 offset:{QPART_OFF + 4*d}")
    e(f"ds_read_b32 v{20+d}, v5 offset:{QPART_OFF + 768 + 4*d}")
g.wait_tag("nonce")
e("v_readfirstlane_b32 s87, v12")
g.nop(3)
e("s_cmp_eq_u32 s87, 0")
e("s_cselect_b32 s86, s86, s87")
e("s_waitcnt lgkmcnt(0)")
for d in range(3):
    e(f"v_add_f32 v{16+d}, v{16+d}, v{20+d}")
e("v_mov_b32 v19, s86")
e("s_lshl_b32 s72, s68, 3")
e("s_add_u32 s72, s72, s69")
e("s_lshl_b32 s72, s72, 10")
e("v_lshlrev_b32 v9, 4, v1")
e("v_add_u32 v5, s72, v9")
e(f"global_store_dwordx4 v5, v[16:19], s[28:29] offset:{WS_Q} sc1")
e("v_mov_b32 v5, 0")
e("v_mov_b32 v6, s86")
e(f"ds_write_b32 v5, v6 offset:{NONCE_OFF}")
stamp(2)
e("s_lshl_b32 s72, s68, 13")
e("v_add_u32 v9, s72, v9")
e("s_mov_b32 s74, 0")
g.lab("L_qg")
for cc in range(8):
    if cc == 4:
        e("v_add_u32 v10, 4096, v9")
    a_ = "v9" if cc < 4 else "v10"
    e(f"global_load_dwordx4 v[{64+4*cc}:{67+4*cc}], {a_}, s[28:29] offset:{WS_Q + 1024*(cc%4)} sc1")
e("s_waitcnt vmcnt(0)")
e("v_cmp_ne_u32 vcc, s86, v67")
for cc in range(1, 8):
    e(f"v_cmp_ne_u32 s[78:79], s86, v{67+4*cc}")
    g.nop(1)
    e("s_or_b64 vcc, vcc, s[78:79]")
e("s_add_u32 s74, s74, 1")
g.nop(4)
e("s_cbranch_vccz L_qg_done")
e("s_cmp_ge_u32 s74, 0x40000")
e("s_cbranch_scc1 L_qg_done")
e("s_branch L_qg")
g.lab("L_qg_done")
for d in range(3):
    for st in (4, 2, 1):
        for k in range(st):
            e(f"v_add_f32 v{64+4*k+d}, v{64+4*k+d}, v{64+4*(k+st)+d}")
e("v_cvt_pk_bf16_f32 v64, v64, v64")
e("v_cvt_pk_bf16_f32 v65, v65, v65")
e("v_cvt_pk_bf16_f32 v66, v66, v66")
e("v_mul_u32_u24 v5, 6, v1")
e(f"ds_write_b16 v5, v64 offset:{QBF_OFF}")
e(f"ds_write_b16 v5, v65 offset:{QBF_OFF+2}")
e(f"ds_write_b16 v5, v66 offset:{QBF_OFF+4}")
e("s_waitcnt lgkmcnt(0)")
e("s_branch L_late_stream")

g.lab("L_wave_h")
g.vm = []
x_loads()
e("v_mul_u32_u24 v6, 3072, v1")
e("s_mul_i32 s72, s30, 12")
e("v_add_u32 v6, s72, v6")
e("s_mov_b32 s72, 0")
for r in range(10):
    g.vmem(f"buffer_load_dwordx3 v[{64+4*r}:{66+4*r}], v6, s[48:51], s72 offen", "w1")
    if r != 9:
        e(f"s_add_u32 s72, s72, {64*3072}")
e("s_mul_i32 s72, s30, 6")
e("v_add_u32 v6, s72, v1")
e("v_lshlrev_b32 v6, 1, v6")
g.vmem("buffer_load_ushort v15, v6, s[60:63], 0 offen", "b1")
e("s_barrier")
g.wait_tag("x")
x_unpack()
layernorm(None)
layernorm(Y_OFF)
e("s_waitcnt lgkmcnt(0)")
e("v_lshlrev_b32 v5, 2, v1")
for r in range(10):
    e(f"ds_read_b32 v{64+4*r+3}, v5 offset:{Y_OFF + 256*r}")
for k in range(16, 22):
    e(f"v_mov_b32 v{k}, 0")
g.wait_tag("b1")
e("s_waitcnt lgkmcnt(0)")
for r in range(10):
    rr = 64 + 4 * r
    e(f"v_lshrrev_b32 v14, 16, v{rr+3}")
    for d in range(3):
        e(f"v_dot2_f32_bf16 v{16+2*d}, v{rr+d}, v14, v{16+2*d}")
        e(f"v_dot2_f32_bf16 v{17+2*d}, v{rr+d}, v{rr+3}, v{17+2*d}")
g.nop(4)
dpp_reduce("v_add_f32", list(range(16, 22)))
e("v_mov_b32 v5, 0")
set_exec("0", "0x80000000")
e(f"ds_write_b64 v5, v[16:17] offset:{HPART_OFF}")
e(f"ds_write_b64 v5, v[18:19] offset:{HPART_OFF+8}")
e(f"ds_write_b64 v5, v[20:21] offset:{HPART_OFF+16}")
set_exec("0x3f", "0")
e("v_lshlrev_b32 v5, 2, v1")
e("s_waitcnt lgkmcnt(0)")
e(f"ds_read_b32 v40, v5 offset:{HPART_OFF}")
e("s_waitcnt lgkmcnt(0)")
rnd(40, 40)
e("v_lshlrev_b32 v41, 16, v15")
e("v_add_f32 v40, v40, v41")
rnd(40, 40)
e("v_mul_f32 v41, v40, v40")
e(f"v_mov_b32 v42, {f32(0.044715)}")
e("v_fma_f32 v41, v41, v42, 1.0")
e("v_mul_f32 v41, v41, v40")
e(f"v_mul_f32 v41, {f32(2.0 * math.sqrt(2.0 / math.pi) * 1.4426950408889634)}, v41")
e("v_exp_f32 v41, v41")
g.nop(1)
e("v_add_f32 v41, 1.0, v41")
e("v_rcp_f32 v41, v41")
g.nop(1)
e("v_fma_f32 v40, -v40, v41, v40")
rnd(40, 40)
e(f"ds_write_b32 v5, v40 offset:{H_OFF}")
full_exec()
e("s_waitcnt vmcnt(0) lgkmcnt(0)")
g.vm = []
issued[0] = 0
pacing[0] = True
issue(INIT)
lds_prefetch()
pacing[0] = False
e("s_barrier")
issue(NSLOT - INIT)
assert g.vm == common_vm
e("s_branch L_join")
g.lab("L_late_stream")
e("s_barrier")
e("s_setprio 0")
g.vm = []
issued[0] = 0
issue(INIT)
lds_prefetch()
issue(NSLOT - INIT)
assert g.vm == common_vm
g.lab("L_join")
stamp(3)
e("v_mov_b32 v5, 0")
e(f"ds_read_b32 v6, v5 offset:{NONCE_OFF}")
e("v_lshrrev_b32 v5, 4, v1")
e("v_lshlrev_b32 v5, 1, v5")
e("v_and_b32 v7, 1, v1")
e("v_add_u32 v5, v5, v7")
e("v_lshlrev_b32 v5, 4, v5")
for j in range(3):
    e(f"ds_read_b128 v[{16+4*j}:{19+4*j}], v5 offset:{QBF_OFF + 128*j}")
e("v_lshrrev_b32 v5, 5, v1")
e("v_lshlrev_b32 v5, 2, v5")
for k in range(56, 62):
    e(f"v_mov_b32 v{k}, 0")
e("s_waitcnt lgkmcnt(0)")
e("v_readfirstlane_b32 s86, v6")
g.nop(3)
if NLDS:
    e(f"s_mul_i32 s74, s70, {NLDS*1024}")
    e(f"s_add_u32 s74, s74, {LBUF_OFF}")
    e("v_lshlrev_b32 v4, 4, v1")
    e("v_add_u32 v4, s74, v4")

def qk(tile):
    for half in range(2):
        for bb in range(4):
            b = 4 * half + bb
            if tile == 1 and 3 * b + 2 < NLDS:
                if lds_pending[0]:
                    e("s_waitcnt lgkmcnt(0)")
                    lds_pending[0] = False
            else:
                if tile == 1 and lds_pending[0]:
                    e("s_waitcnt lgkmcnt(0)")
                    lds_pending[0] = False
                g.wait_tag(f"K{tile}_{3*b+2}")
            for j in range(3):
                r = slot_reg("K", tile, 3 * b + j)
                c = "0" if j == 0 else f"v[{40+4*bb}:{43+4*bb}]"
                e(f"v_mfma_f32_16x16x32_bf16 v[{40+4*bb}:{43+4*bb}], v[{16+4*j}:{19+4*j}], v[{r}:{r+3}], {c}")
            issue(3)
        g.nop(10)
        for bb in range(4):
            e(f"v_cndmask_b32 v{40+4*bb}, v{40+4*bb}, v{41+4*bb}, s[20:21]")
        g.nop(1)
        for bb in range(4):
            e(f"v_add_f32_dpp v{41+4*bb}, v{40+4*bb}, v{40+4*bb} row_ror:8 row_mask:0xf bank_mask:0xf")
        for bb in range(4):
            b = 4 * half + bb
            if b == 0:
                e("v_mov_b32 v62, v41")
            else:
                e(f"v_cndmask_b32 v62, v62, v{41+4*bb}, s[{4+2*b}:{5+2*b}]")
    rnd(62, 62)
    e(f"v_mul_f32 v62, {SCALE}, v62")
    rnd(62, 62)
    e("v_mov_b32 v63, v62")
    reduce_to_sgpr("v_max_f32", 63, 76)
def softmax(tile):
    if tile == 0:
        e("s_mov_b32 s77, s76")
        e("v_subrev_f32 v62, s77, v62")
        e(f"v_mul_f32 v62, {LOG2E}, v62")
        e("v_exp_f32 v62, v62")
        g.nop(1)
        e("v_mov_b32 v12, v62")
    else:
        e("v_mov_b32 v6, s76")
        e("v_max_f32 v6, s77, v6")
        g.nop(1)
        e("v_readfirstlane_b32 s78, v6")
        e("v_sub_f32 v6, s77, v6")
        e(f"v_mul_f32 v6, {LOG2E}, v6")
        e("v_exp_f32 v6, v6")
        e("s_mov_b32 s77, s78")
        g.nop(2)
        e("v_subrev_f32 v62, s77, v62")
        e(f"v_mul_f32 v62, {LOG2E}, v62")
        e("v_exp_f32 v62, v62")
        for k in range(56, 62):
            e(f"v_mul_f32 v{k}, v{k}, v6")
        e("v_fma_f32 v12, v12, v6, v62")
    rnd(62, 62)
def pv(tile):
    for i in range(32):
        if "nocomp" in OPTS:
            break
        e(f"ds_bpermute_b32 v{slot_reg('V', tile, i)+3}, v5, v62 offset:{8*i}")
        if i % 8 == 7:
            e("s_waitcnt lgkmcnt(0)")
    for i in range(32):
        r = slot_reg("V", tile, i)
        if i % 2 == 0:
            g.wait_tag(f"V{tile}_{i+1}")
        if "nocomp" not in OPTS:
            e(f"v_lshrrev_b32 v14, 16, v{r+3}")
            for d in range(3):
                e(f"v_dot2_f32_bf16 v{56+2*d}, v{r+d}, v14, v{56+2*d}")
                e(f"v_dot2_f32_bf16 v{57+2*d}, v{r+d}, v{r+3}, v{57+2*d}")
        if i % 2 == 1:
            issue(2)

qk(0)
stamp(4)
softmax(0)
pv(0)
stamp(5)
qk(1)
stamp(6)
e("v_mov_b32 v7, 52429")
e("v_mul_u32_u24 v7, v0, v7")
e("v_lshrrev_b32 v7, 22, v7")
e("v_mul_u32_u24 v8, 80, v7")
e("v_sub_u32 v8, v0, v8")
e("v_lshlrev_b32 v9, 2, v7")
e("s_mul_i32 s72, s68, 192")
e("s_mul_i32 s74, s69, 24")
e("s_add_u32 s72, s72, s74")
e("v_add_u32 v9, s72, v9")
e("v_mul_u32_u24 v9, 1280, v9")
e("v_lshlrev_b32 v10, 4, v8")
e("v_add_u32 v9, v9, v10")
for i in range(4):
    g.vmem(f"buffer_load_dwordx4 v[{144+4*i}:{147+4*i}], v9, s[44:47], 0 offen offset:{1280*i}", "wo")
e("s_mul_i32 s72, s30, 6")
e("v_add_u32 v9, s72, v7")
e("v_mul_u32_u24 v9, 1280, v9")
e("v_add_u32 v9, v9, v10")
g.vmem("buffer_load_dwordx4 v[140:143], v9, s[52:55], 0 offen", "w2")
e("v_mov_b32 v138, v7")
e("v_mov_b32 v139, v8")
if LINMAP:
    e("v_lshrrev_b32 v9, 3, v0")
    e("v_and_b32 v9, 31, v9")
else:
    e("v_and_b32 v9, 7, v0")
    e("v_lshlrev_b32 v9, 2, v9")
    e("v_lshrrev_b32 v10, 3, v0")
    e("v_and_b32 v10, 3, v10")
    e("v_add_u32 v9, v9, v10")
e("v_lshlrev_b32 v9, 3, v9")
e("v_mov_b32 v135, v9")
g.vmem("global_load_dword v137, v9, s[26:27] sc1", "nonces")
softmax(1)
pv(1)
stamp(7)
if "streamonly" in OPTS:
    e("s_branch L_fin")

reduce_to_sgpr("v_add_f32", 12, 79)
e(f"ds_write_b64 v13, v[56:57] offset:{QPART_OFF}")
e(f"ds_write_b64 v13, v[58:59] offset:{QPART_OFF+8}")
e(f"ds_write_b64 v13, v[60:61] offset:{QPART_OFF+16}")
e("v_mov_b32 v6, s77")
e("v_mov_b32 v7, s79")
e("s_lshl_b32 s72, s70, 3")
e("v_mov_b32 v5, s72")
set_exec("1", "0")
e(f"ds_write_b64 v5, v[6:7] offset:{ML_OFF}")
full_exec()
e("s_waitcnt lgkmcnt(0)")
e("s_barrier")
e("s_cmp_ge_u32 s70, 3")
e("s_cbranch_scc1 L_comb_done")
e("v_mov_b32 v5, 0")
for w in range(8):
    e(f"ds_read_b64 v[{40+2*w}:{41+2*w}], v5 offset:{ML_OFF + 8*w}")
e("v_lshlrev_b32 v5, 2, v0")
for k in range(16):
    e(f"ds_read_b32 v{64+k}, v5 offset:{QPART_OFF + 768*k}")
e("s_waitcnt lgkmcnt(0)")
e("v_max_f32 v6, v40, v42")
for w in range(2, 8):
    e(f"v_max_f32 v6, v6, v{40+2*w}")
for w in range(8):
    e(f"v_sub_f32 v{40+2*w}, v{40+2*w}, v6")
    e(f"v_mul_f32 v{40+2*w}, {LOG2E}, v{40+2*w}")
    e(f"v_exp_f32 v{40+2*w}, v{40+2*w}")
g.nop(1)
e("v_mul_f32 v7, v40, v41")
for w in range(1, 8):
    e(f"v_fma_f32 v7, v{40+2*w}, v{41+2*w}, v7")
for w in range(8):
    e(f"v_add_f32 v{64+2*w}, v{64+2*w}, v{65+2*w}")
e("v_mul_f32 v8, v40, v64")
for w in range(1, 8):
    e(f"v_fma_f32 v8, v{40+2*w}, v{64+2*w}, v8")
e(f"ds_write_b32 v5, v8 offset:{OSUM_OFF}")
e("s_cmp_lg_u32 s70, 0")
e("s_cbranch_scc1 L_comb_done")
set_exec("1", "0")
e(f"ds_write_b64 v5, v[6:7] offset:{OSUM_OFF+768}")
full_exec()
g.lab("L_comb_done")
e("s_waitcnt lgkmcnt(0)")
e("s_barrier")
e("s_lshl_b32 s72, s68, 3")
e("s_add_u32 s72, s72, s69")
e("s_lshl_b32 s72, s72, 11")
e(f"s_add_u32 s72, s72, {WS_O}")
e("s_cmp_gt_u32 s70, 1")
e("s_cbranch_scc1 L_opub_done")
e("v_mul_u32_u24 v5, 12, v0")
e(f"ds_read_b32 v40, v5 offset:{OSUM_OFF}")
e(f"ds_read_b32 v41, v5 offset:{OSUM_OFF+4}")
e(f"ds_read_b32 v42, v5 offset:{OSUM_OFF+8}")
e("v_mov_b32 v43, s86")
e("v_lshlrev_b32 v6, 4, v0")
e("v_add_u32 v6, s72, v6")
e("s_cmp_eq_u32 s70, 0")
e("s_cbranch_scc1 L_opub_st")
set_exec("1", "0")
g.lab("L_opub_st")
e("s_waitcnt lgkmcnt(0)")
e("global_store_dwordx4 v6, v[40:43], s[28:29] sc1")
full_exec()
g.lab("L_opub_done")
e("s_cmp_gt_u32 s70, 1")
e("s_cbranch_scc1 L_og_done")
e("s_lshl_b32 s72, s68, 14")
e(f"s_add_u32 s72, s72, {WS_O}")
e("s_cmp_eq_u32 s70, 1")
e("s_cbranch_scc1 L_og_ml")
e("v_lshrrev_b32 v6, 3, v1")
e("v_lshlrev_b32 v9, 11, v6")
e("v_and_b32 v7, 7, v1")
e("s_lshl_b32 s74, s69, 3")
e("v_add_u32 v8, s74, v7")
e("v_lshlrev_b32 v8, 4, v8")
e("v_add_u32 v9, v9, v8")
e("v_add_u32 v9, s72, v9")
poll_granule(40, 9, 0, "s86")
e("v_mul_u32_u24 v5, 96, v6")
e("v_mul_u32_u24 v7, 12, v7")
e("v_add_u32 v5, v5, v7")
e(f"ds_write_b32 v5, v40 offset:{OG_OFF}")
e(f"ds_write_b32 v5, v41 offset:{OG_OFF+4}")
e(f"ds_write_b32 v5, v42 offset:{OG_OFF+8}")
e("s_branch L_og_done")
g.lab("L_og_ml")
set_exec("0xff", "0")
e("v_lshlrev_b32 v9, 11, v1")
e("v_add_u32 v9, s72, v9")
poll_granule(40, 9, 1024, "s86")
e("v_lshlrev_b32 v5, 3, v1")
e(f"ds_write_b64 v5, v[40:41] offset:{OG_OFF+768}")
full_exec()
g.lab("L_og_done")
e("s_waitcnt lgkmcnt(0)")
e("s_barrier")
e("s_cmp_lg_u32 s70, 0")
e("s_cbranch_scc1 L_ofin_done")
set_exec("0xffffff", "0")
e("v_mov_b32 v5, 0")
for w in range(8):
    e(f"ds_read_b64 v[{40+2*w}:{41+2*w}], v5 offset:{OG_OFF + 768 + 8*w}")
e("v_lshlrev_b32 v5, 2, v1")
for w in range(8):
    e(f"ds_read_b32 v{64+w}, v5 offset:{OG_OFF + 96*w}")
e("s_waitcnt lgkmcnt(0)")
e("v_max_f32 v6, v40, v42")
for w in range(2, 8):
    e(f"v_max_f32 v6, v6, v{40+2*w}")
for w in range(8):
    e(f"v_sub_f32 v{40+2*w}, v{40+2*w}, v6")
    e(f"v_mul_f32 v{40+2*w}, {LOG2E}, v{40+2*w}")
    e(f"v_exp_f32 v{40+2*w}, v{40+2*w}")
g.nop(1)
e("v_mul_f32 v7, v40, v41")
for w in range(1, 8):
    e(f"v_fma_f32 v7, v{40+2*w}, v{41+2*w}, v7")
e("v_mul_f32 v8, v40, v64")
for w in range(1, 8):
    e(f"v_fma_f32 v8, v{40+2*w}, v{64+w}, v8")
e("v_rcp_f32 v7, v7")
g.nop(1)
e("v_mul_f32 v8, v8, v7")
rnd(8, 8)
e(f"ds_write_b32 v5, v8 offset:{OFIN_OFF}")
full_exec()
e("s_waitcnt lgkmcnt(0)")
g.lab("L_ofin_done")
e("s_barrier")
stamp(8)
e("v_lshlrev_b32 v5, 4, v138")
e(f"ds_read_b128 v[6:9], v5 offset:{OFIN_OFF}")
e("v_lshlrev_b32 v5, 2, v138")
e(f"ds_read_b32 v10, v5 offset:{H_OFF}")
for k in range(40, 56):
    e(f"v_mov_b32 v{k}, 0")
e("s_waitcnt vmcnt(0) lgkmcnt(0)")
for i in range(4):
    e(f"v_lshrrev_b32 v14, 16, v{6+i}")
    for d in range(4):
        e(f"v_dot2_f32_bf16 v{40+2*d}, v{144+4*i+d}, v14, v{40+2*d}")
        e(f"v_dot2_f32_bf16 v{41+2*d}, v{144+4*i+d}, v{6+i}, v{41+2*d}")
e("v_lshrrev_b32 v14, 16, v10")
for d in range(4):
    e(f"v_dot2_f32_bf16 v{48+2*d}, v{140+d}, v14, v{48+2*d}")
    e(f"v_dot2_f32_bf16 v{49+2*d}, v{140+d}, v10, v{49+2*d}")
e("v_mul_u32_u24 v5, 2560, v138")
e("v_lshlrev_b32 v6, 5, v139")
e("v_add_u32 v5, v5, v6")
e("v_cmp_gt_u32 vcc, 480, v0")
e("s_and_saveexec_b64 s[78:79], vcc")
g.nop(2)
e(f"ds_write_b128 v5, v[40:43] offset:{S2_OFF}")
e(f"ds_write_b128 v5, v[44:47] offset:{S2_OFF+16}")
e(f"ds_write_b128 v5, v[48:51] offset:{S2_OFF+15360}")
e(f"ds_write_b128 v5, v[52:55] offset:{S2_OFF+15360+16}")
full_exec()
e("s_waitcnt lgkmcnt(0)")
e("s_barrier")
e("v_cmp_le_u32 vcc, 214, v0")
e("v_subrev_u32 v6, 214, v0")
g.nop(1)
e("v_cndmask_b32 v6, v0, v6, vcc")
e("v_cndmask_b32 v7, 0, 1, vcc")
e("v_mul_u32_u24 v5, 15360, v7")
e("v_mul_u32_u24 v8, 12, v6")
e("v_add_u32 v5, v5, v8")
e("v_cmp_gt_u32 vcc, 428, v0")
e("s_and_saveexec_b64 s[78:79], vcc")
e("s_cbranch_execz L_s2_done")
for rg in range(6):
    for k in range(3):
        e(f"ds_read_b32 v{40+4*rg+k}, v5 offset:{S2_OFF + 2560*rg + 4*k}")
e("s_waitcnt lgkmcnt(0)")
for rg in range(1, 6):
    for k in range(3):
        e(f"v_add_f32 v{40+k}, v{40+k}, v{40+4*rg+k}")
e("v_mov_b32 v43, s86")
e("v_mul_u32_u24 v9, 3424, v7")
e("v_lshlrev_b32 v8, 4, v6")
e("v_add_u32 v9, v9, v8")
e("s_lshl_b32 s72, s2, 13")
e(f"s_add_u32 s72, s72, {WS_S}")
e("v_add_u32 v9, s72, v9")
e("global_store_dwordx4 v9, v[40:43], s[28:29] sc1")
g.lab("L_s2_done")
full_exec()
e("s_cmp_ge_u32 s2, 214")
e("s_cbranch_scc1 L_fin")
e("v_lshrrev_b32 v7, 8, v0")
e("v_and_b32 v6, 255, v0")
e("v_lshlrev_b32 v6, 13, v6")
e("v_mul_u32_u24 v9, 3424, v7")
e("v_add_u32 v9, v9, v6")
e("s_lshl_b32 s72, s2, 4")
e(f"s_add_u32 s72, s72, {WS_S}")
e("v_add_u32 v9, s72, v9")
e("s_mul_i32 s72, s2, 3")
e("v_add_u32 v5, s72, v1")
e("v_lshlrev_b32 v5, 1, v5")
e("buffer_load_ushort v44, v5, s[56:59], 0 offen")
e("buffer_load_ushort v45, v5, s[64:67], 0 offen")
SLP = 1
for o in OPTS:
    if o.startswith("slp"):
        SLP = int(o[3:])
e("s_mov_b32 s74, 0")
g.lab("L_fpoll")
e("global_load_dwordx4 v[40:43], v9, s[28:29] sc1")
e("s_waitcnt vmcnt(0)")
e("v_cmp_ne_u32 vcc, v137, v43")
e("v_cmp_eq_u32 s[78:79], 0, v137")
e("s_add_u32 s74, s74, 1")
g.nop(4)
e("s_or_b64 vcc, vcc, s[78:79]")
g.nop(4)
e("s_cbranch_vccz L_fpoll_done")
e("s_cmp_ge_u32 s74, 0x40000")
e("s_cbranch_scc1 L_fpoll_done")
e("s_mov_b64 exec, vcc")
e(f"s_sleep {SLP}")
e("global_load_dword v137, v135, s[26:27] sc1")
e("s_branch L_fpoll")
g.lab("L_fpoll_done")
full_exec()
stamp(9)
dpp_reduce("v_add_f32", [40, 41, 42])
e("s_lshl_b32 s72, s70, 4")
e("v_mov_b32 v6, s72")
set_exec("0", "0x80000000")
e(f"ds_write_b128 v6, v[40:43] offset:{RED_OFF}")
full_exec()
e("s_waitcnt lgkmcnt(0)")
e("s_barrier")
e("s_cmp_lg_u32 s70, 0")
e("s_cbranch_scc1 L_fin")
set_exec("0x7", "0")
e("v_lshlrev_b32 v6, 2, v1")
for w in range(8):
    e(f"ds_read_b32 v{48+w}, v6 offset:{RED_OFF + 16*w}")
e("s_waitcnt lgkmcnt(0)")
e("v_add_f32 v48, v48, v49")
e("v_add_f32 v50, v50, v51")
e("v_add_f32 v48, v48, v50")
e("v_add_f32 v52, v52, v53")
e("v_add_f32 v54, v54, v55")
e("v_add_f32 v52, v52, v54")
rnd(48, 48)
rnd(52, 52)
e("v_lshlrev_b32 v45, 16, v45")
e("v_add_f32 v52, v52, v45")
rnd(52, 52)
e(f"v_mul_f32 v53, {f32(-1.4426950408889634)}, v52")
e("v_exp_f32 v53, v53")
g.nop(1)
e("v_add_f32 v53, 1.0, v53")
e("v_rcp_f32 v53, v53")
g.nop(1)
e("v_mul_f32 v52, v52, v53")
rnd(52, 52)
e("v_mul_f32 v48, v48, v52")
rnd(48, 48)
e("v_lshlrev_b32 v44, 16, v44")
e("v_add_f32 v48, v44, v48")
e("v_cvt_pk_bf16_f32 v48, v48, v48")
e("v_cmp_gt_u32 vcc, 1280, v5")
e("s_and_saveexec_b64 s[78:79], vcc")
e("s_cbranch_execz L_nostore")
e("global_store_short v5, v48, s[24:25]")
g.lab("L_nostore")
full_exec()
g.lab("L_fin")
if STAMPS:
    stamp(10)
    e("s_lshl_b32 s72, s2, 3")
    e("s_add_u32 s72, s72, s70")
    e("s_lshl_b32 s72, s72, 6")
    e(f"s_add_u32 s72, s72, {WS_STAMP}")
    e("v_mov_b32 v5, s72")
    set_exec("1", "0")
    for i in range(11):
        e(f"v_mov_b32 v6, s{88+i}")
        e(f"global_store_dword v5, v6, s[28:29] offset:{4*i}")
        e("s_waitcnt vmcnt(0)")
    full_exec()
g.lab("L_end")
e("s_endpgm")

hdr = open(f"cdna_kernels/{NAME}.s.ref").read().split("; Override launch")[0]
txt = hdr + f"""; Override launch geometry by editing the next line (default: block=256,
; grid=ceil(out_elems/256), lds=0). Harness parses it; keep it on one line.
; @launch grid=(256,1,1) block=(512,1,1) lds={LDS_BYTES}
.amdgcn_target "amdgcn-amd-amdhsa--gfx950"
.text
.globl {NAME}_kernel
.p2align 8
.type {NAME}_kernel,@function
{NAME}_kernel:
""" + "\n".join(g.L) + f"""
.section .rodata,"a"
.p2align 6
.amdhsa_kernel {NAME}_kernel
  .amdhsa_next_free_vgpr 256
  .amdhsa_next_free_sgpr 102
  .amdhsa_accum_offset 256
  .amdhsa_group_segment_fixed_size 0
  .amdhsa_kernarg_size 104
  .amdhsa_user_sgpr_count 2
  .amdhsa_user_sgpr_kernarg_segment_ptr 1
  .amdhsa_system_sgpr_workgroup_id_x 1
.end_amdhsa_kernel
"""
open(OUT, "w").write(txt)
print("wrote", OUT, len(g.L), "lines")
```

```python
import struct, sys, math

NAME = "recurrent_scan__gqa_block_cached__mixer_channel_mlp__decode"
OUT = sys.argv[1] if len(sys.argv) > 1 else f"cdna_kernels/{NAME}.s"
OPTS = set(sys.argv[2:])
NT = "nont" not in OPTS
STAMPS = "stamps" in OPTS

def f32(x):
    return "0x%08x" % struct.unpack("<I", struct.pack("<f", x))[0]

LOG2E = f32(1.4426950408889634)
SCALE = f32(192 ** -0.5)
INV640 = f32(1.0 / 640.0)
EPS = f32(1e-5)

XN_OFF = 0
Y_OFF = 2560
QPART_OFF = 5120
HPART_OFF = 17408
QBF_OFF = 17664
H_OFF = 18048
ML_OFF = 18080
OFIN_OFF = 18144
RED_OFF = 18240
NONCE_OFF = 18400
OSUM_OFF = 18432
OG_OFF = 19456
S2_OFF = 20480
LBUF_OFF = 20480
NLDS = 0
for o in OPTS:
    if o.startswith("lds"):
        NLDS = int(o[3:])
WBUF_OFF = S2_OFF + 2 * 6 * 2560 + 64 + 192
LDS_BYTES = WBUF_OFF + 8 * 5 * 1024
WS_CNT = 0x300000
WS_Q = 0
WS_O = 0x40000
WS_S = 0x100000
WS_STAMP = 0x400000

class G:
    def __init__(s):
        s.L = []
        s.vm = []
    def e(s, t):
        s.L.append("    " + t)
    def lab(s, t):
        s.L.append(t + ":")
    def vmem(s, t, tag):
        s.e(t)
        s.vm.append(tag)
    def wait_tag(s, tag):
        idx = max(i for i, t in enumerate(s.vm) if t == tag)
        n = min(len(s.vm) - 1 - idx, 63)
        s.e(f"s_waitcnt vmcnt({n})")
    def nop(s, n):
        while n > 0:
            k = min(n, 16)
            s.e(f"s_nop {k-1}")
            n -= k

g = G()
e = g.e

def rnd(dst, src):
    e(f"v_cvt_pk_bf16_f32 v{dst}, v{src}, v{src}")
    e(f"v_and_b32 v{dst}, 0xffff0000, v{dst}")

def dpp_reduce(op, regs):
    steps = ["row_shr:1 row_mask:0xf bank_mask:0xf", "row_shr:2 row_mask:0xf bank_mask:0xf",
             "row_shr:4 row_mask:0xf bank_mask:0xf", "row_shr:8 row_mask:0xf bank_mask:0xf",
             "row_bcast:15 row_mask:0xa bank_mask:0xf", "row_bcast:31 row_mask:0xc bank_mask:0xf"]
    for st in steps:
        if len(regs) < 3:
            g.nop(2)
        for r in regs:
            e(f"{op}_dpp v{r}, v{r}, v{r} {st}")

def reduce_to_sgpr(op, r, sd):
    dpp_reduce(op, [r])
    g.nop(1)
    e(f"v_readlane_b32 s{sd}, v{r}, 63")
    g.nop(2)

def set_exec(lo, hi):
    e(f"s_mov_b32 exec_lo, {lo}")
    e(f"s_mov_b32 exec_hi, {hi}")

def full_exec():
    e("s_mov_b64 exec, -1")

ntf = " nt" if NT else ""
EARLY = "early" in OPTS
def stamp(i, early=False):
    if EARLY and i in (4, 5, 6) and not early:
        return
    if early and not EARLY:
        return
    if STAMPS:
        e("s_memrealtime s[100:101]")
        e("s_waitcnt lgkmcnt(0)")
        e(f"s_mov_b32 s{88+i}, s100")

_poll_id = [0]
def poll_granule(vdst, vaddr, ws_off, tag_src):
    n = _poll_id[0]; _poll_id[0] += 1
    e("s_mov_b32 s74, 0")
    g.lab(f"L_poll{n}")
    e(f"global_load_dwordx4 v[{vdst}:{vdst+3}], v{vaddr}, s[28:29] offset:{ws_off} sc1")
    e("s_waitcnt vmcnt(0)")
    e(f"v_cmp_ne_u32 vcc, {tag_src}, v{vdst+3}")
    e("s_add_u32 s74, s74, 1")
    g.nop(4)
    e(f"s_cbranch_vccz L_poll{n}_done")
    e("s_cmp_ge_u32 s74, 0x40000")
    e(f"s_cbranch_scc1 L_poll{n}_done")
    e("s_sleep 1")
    e(f"s_branch L_poll{n}")
    g.lab(f"L_poll{n}_done")

e("s_cmp_ge_u32 s2, 256")
e("s_cbranch_scc1 L_end")
stamp(0)
e("s_load_dwordx16 s[4:19], s[0:1], 0")
e("s_load_dwordx8 s[20:27], s[0:1], 64")
e("s_load_dwordx2 s[28:29], s[0:1], 96")
e("s_memrealtime s[86:87]")
e("v_and_b32 v1, 63, v0")
e("v_lshrrev_b32 v5, 6, v0")
g.nop(1)
e("v_readfirstlane_b32 s70, v5")
LINMAP = True
if LINMAP:
    e("s_lshr_b32 s68, s2, 3")
    e("s_and_b32 s69, s2, 7")
else:
    e("s_and_b32 s68, s2, 7")
    e("s_lshl_b32 s68, s68, 2")
    e("s_lshr_b32 s69, s2, 3")
    e("s_and_b32 s69, s69, 3")
    e("s_add_u32 s68, s68, s69")
    e("s_lshr_b32 s69, s2, 5")
e("s_and_b32 s30, s2, 7")
e("s_lshl_b32 s30, s30, 5")
e("s_lshr_b32 s31, s2, 3")
e("s_add_u32 s30, s30, s31")
e("v_and_b32 v6, 7, v1")
e("v_mul_u32_u24 v2, 384, v6")
e("v_lshrrev_b32 v6, 3, v1")
e("v_lshlrev_b32 v6, 4, v6")
e("v_add_u32 v2, v2, v6")
e("v_lshrrev_b32 v7, 5, v1")
e("v_and_b32 v8, 31, v1")
e("v_mul_u32_u24 v3, 384, v7")
e("v_mul_u32_u24 v6, 12, v8")
e("v_add_u32 v3, v3, v6")
e("s_waitcnt lgkmcnt(0)")
def srd(base, ptr, nbytes):
    e(f"s_mov_b32 s{base}, s{ptr}")
    e(f"s_and_b32 s{base+1}, s{ptr+1}, 0xffff")
    e(f"s_mov_b32 s{base+2}, {nbytes}")
    e(f"s_mov_b32 s{base+3}, 0x00020000")
srd(56, 4, 1280)
srd(32, 6, 100663296)
srd(36, 8, 100663296)
srd(40, 10, 7864320)
srd(44, 12, 7864320)
srd(48, 16, 1966080)
srd(60, 18, 3072)
srd(52, 20, 1966080)
srd(64, 22, 1280)
for b in range(8):
    e(f"s_mov_b32 s{4+2*b}, {hex((0xff << (8*b)) & 0xffffffff) if b < 4 else 0}")
    e(f"s_mov_b32 s{5+2*b}, {hex((0xff << (8*(b-4))) & 0xffffffff) if b >= 4 else 0}")
e("s_mov_b32 s20, 0xff00ff00")
e("s_mov_b32 s21, 0xff00ff00")
e("s_mul_i32 s73, s68, 3145728")
STATIC = "static" in OPTS
SKEW = 0
for o in OPTS:
    if o.startswith("skew"):
        SKEW = int(o[4:])
if STATIC:
    e("s_lshl_b32 s74, s69, 4")
    e("s_and_b32 s75, s69, 1")
    e(f"s_mul_i32 s72, s75, {SKEW}")
    e("s_add_u32 s74, s74, s72")
    e(f"s_mul_i32 s72, s75, {2*SKEW}")
    e(f"s_add_u32 s24, s74, {16+SKEW}")
    e("s_sub_u32 s24, s24, s72")
    e("s_add_u32 s74, s74, s70")
    e("s_mov_b32 s31, s74")
else:
    e("s_lshl_b32 s74, s69, 3")
    e("s_add_u32 s74, s74, s70")
e("s_mul_i32 s74, s74, 24576")
e("s_add_u32 s22, s73, s74")
e("s_or_b32 s86, s86, 1")
e("v_lshrrev_b32 v6, 5, v1")
e("s_lshl_b32 s72, s70, 1")
e("v_add_u32 v6, s72, v6")
e("v_mul_u32_u24 v6, 768, v6")
e("v_mul_u32_u24 v9, 24, v8")
e("v_add_u32 v13, v6, v9")
e("s_lshl_b32 s72, s68, 7")
e(f"s_add_u32 s72, s72, {WS_CNT}")
if "streamonly" in OPTS:
    e("s_lshl_b32 s72, s68, 3")
    e("s_add_u32 s72, s72, 4")
e("v_mov_b32 v28, s72")
e("v_mov_b32 v29, 1")
def k_issue(n, base):
    for i in range(24):
        b, j = divmod(i, 3)
        r = 64 + 4 * i
        if j == 0:
            e(f"s_add_u32 s72, s{base}, {b*3072}")
        g.vmem(f"buffer_load_dwordx4 v[{r}:{r+3}], v2, s[32:35], s72 offen offset:{128*j}{ntf}", f"K{n}_{i}")
def vslot(n, i):
    return 160 + 4 * ((32 * n + i) % 24)
def v_issue(n, i, base):
    r = vslot(n, i)
    e(f"s_add_u32 s72, s{base}, {i*768}")
    g.vmem(f"buffer_load_dwordx3 v[{r}:{r+2}], v3, s[36:39], s72 offen{ntf}", f"V{n}_{i}")
def w_dma():
    e("v_mov_b32 v6, 52429")
    e("v_mul_u32_u24 v6, v0, v6")
    e("v_lshrrev_b32 v6, 22, v6")
    e("v_mul_u32_u24 v9, 80, v6")
    e("v_sub_u32 v9, v0, v9")
    e("v_lshlrev_b32 v9, 4, v9")
    e("v_lshlrev_b32 v12, 2, v6")
    e("s_mul_i32 s72, s68, 192")
    e("s_mul_i32 s74, s69, 24")
    e("s_add_u32 s72, s72, s74")
    e("v_add_u32 v12, s72, v12")
    e("v_mul_u32_u24 v12, 1280, v12")
    e("v_add_u32 v12, v12, v9")
    e("s_mul_i32 s74, s70, 5120")
    e(f"s_add_u32 s74, s74, {WBUF_OFF}")
    for i in range(4):
        e(f"s_add_u32 m0, s74, {1024*i}")
        e(f"s_mov_b32 s72, {1280*i}")
        g.vmem("buffer_load_dwordx4 v12, s[44:47], s72 offen lds", "W")
    e("s_mul_i32 s72, s30, 6")
    e("v_add_u32 v12, s72, v6")
    e("v_mul_u32_u24 v12, 1280, v12")
    e("v_add_u32 v12, v12, v9")
    e("s_add_u32 m0, s74, 4096")
    e("s_nop 0")
    g.vmem("buffer_load_dwordx4 v12, s[52:55], 0 offen lds", "W")
LATEBAR = "latebar" in OPTS
NV0 = 24
for o in OPTS:
    if o.startswith("nv"):
        NV0 = int(o[2:])
def first_issue(bar):
    k_issue(0, 22)
    for i in range(NV0):
        v_issue(0, i, 22)
    if bar:
        e("s_barrier")
    for i in range(NV0, 24):
        v_issue(0, i, 22)
    w_dma()
def x_loads():
    e("v_lshlrev_b32 v5, 2, v1")
    for r in range(5):
        g.vmem(f"buffer_load_dword v{47+r}, v5, s[56:59], 0 offen offset:{256*r}", "x")
def x_unpack():
    for r in range(5):
        e(f"v_lshlrev_b32 v{52+2*r}, 16, v{47+r}")
        e(f"v_and_b32 v{53+2*r}, 0xffff0000, v{47+r}")
def layernorm(lds_off):
    e("v_add_f32 v43, v52, v53")
    for k in range(54, 62):
        e(f"v_add_f32 v43, v43, v{k}")
    reduce_to_sgpr("v_add_f32", 43, 74)
    e(f"v_mov_b32 v62, {INV640}")
    e("v_mul_f32 v62, s74, v62")
    e("v_sub_f32 v63, v52, v62")
    e("v_mul_f32 v43, v63, v63")
    for k in range(53, 62):
        e(f"v_sub_f32 v63, v{k}, v62")
        e("v_fma_f32 v43, v63, v63, v43")
    reduce_to_sgpr("v_add_f32", 43, 74)
    e(f"v_mov_b32 v63, {INV640}")
    e("v_mul_f32 v63, s74, v63")
    rnd(62, 62)
    rnd(63, 63)
    e(f"v_add_f32 v63, {EPS}, v63")
    rnd(63, 63)
    e("v_sqrt_f32 v63, v63")
    g.nop(1)
    rnd(63, 63)
    e("v_rcp_f32 v63, v63")
    g.nop(1)
    for k in range(52, 62):
        e(f"v_sub_f32 v{k}, v{k}, v62")
        rnd(k, k)
        e(f"v_mul_f32 v{k}, v{k}, v63")
        rnd(k, k)
    if lds_off is not None:
        e("v_lshlrev_b32 v5, 3, v1")
        for r in range(5):
            e(f"ds_write_b64 v5, v[{52+2*r}:{53+2*r}] offset:{lds_off + 512*r}")

if "streamonly" not in OPTS:
    e("s_cmp_eq_u32 s70, 0")
    e("s_cbranch_scc1 L_wave_q")
    e("s_cmp_eq_u32 s70, 1")
    e("s_cbranch_scc1 L_wave_h")
g.vm = []
e("s_barrier")
first_issue(True)
common_vm = list(g.vm)
e("s_branch L_join")

g.lab("L_wave_q")
if "noprio" not in OPTS:
    e("s_setprio 3")
g.vm = []
x_loads()
e("s_mul_i32 s71, s69, 80")
e("v_add_u32 v4, s71, v7")
e("v_mov_b32 v9, 12288")
e("v_mul_lo_u32 v4, v4, v9")
e("v_mul_u32_u24 v6, 12, v8")
e("v_add_u32 v4, v4, v6")
e("s_mul_i32 s72, s68, 384")
e("v_add_u32 v4, s72, v4")
e("s_mov_b32 s72, 0")
for i in range(40):
    r = 64 + 4 * i
    g.vmem(f"buffer_load_dwordx3 v[{r}:{r+2}], v4, s[40:43], s72 offen", f"wq{i//10}")
    if i != 39:
        e("s_add_u32 s72, s72, 24576")
e("s_lshl_b32 s72, s68, 3")
e("v_mov_b32 v9, s72")
e("v_mov_b32 v10, s86")
e("v_mov_b32 v11, 0")
set_exec("1", "0")
g.vmem("global_atomic_cmpswap v12, v9, v[10:11], s[26:27] sc0 sc1", "nonce")
full_exec()
if not LATEBAR:
    e("s_barrier")
g.wait_tag("x")
stamp(6, True)
x_unpack()
layernorm(XN_OFF)
e("s_waitcnt lgkmcnt(0)")
stamp(1)
for k in range(56, 62):
    e(f"v_mov_b32 v{k}, 0")
e("v_lshrrev_b32 v5, 5, v1")
e("v_add_u32 v5, s71, v5")
e("v_lshlrev_b32 v5, 2, v5")
for i in range(40):
    e(f"ds_read_b32 v{64+4*i+3}, v5 offset:{XN_OFF + 8*i}")
e("s_waitcnt lgkmcnt(0)")
if LATEBAR:
    g.wait_tag("wq3")
    e("s_barrier")
for i in range(40):
    if i % 10 == 0:
        g.wait_tag(f"wq{i//10}")
    r = 64 + 4 * i
    e(f"v_lshrrev_b32 v14, 16, v{r+3}")
    for d in range(3):
        e(f"v_dot2_f32_bf16 v{56+2*d}, v{r+d}, v14, v{56+2*d}")
        e(f"v_dot2_f32_bf16 v{57+2*d}, v{r+d}, v{r+3}, v{57+2*d}")
stamp(4, True)
g.nop(3)
e(f"ds_write_b64 v13, v[56:57] offset:{QPART_OFF}")
e(f"ds_write_b64 v13, v[58:59] offset:{QPART_OFF+8}")
e(f"ds_write_b64 v13, v[60:61] offset:{QPART_OFF+16}")
e("v_mul_u32_u24 v5, 12, v1")
e("s_waitcnt lgkmcnt(0)")
for d in range(3):
    e(f"ds_read_b32 v{16+d}, v5 offset:{QPART_OFF + 4*d}")
    e(f"ds_read_b32 v{20+d}, v5 offset:{QPART_OFF + 768 + 4*d}")
g.wait_tag("nonce")
stamp(5, True)
e("v_readfirstlane_b32 s87, v12")
g.nop(3)
e("s_cmp_eq_u32 s87, 0")
e("s_cselect_b32 s86, s86, s87")
e("s_waitcnt lgkmcnt(0)")
for d in range(3):
    e(f"v_add_f32 v{16+d}, v{16+d}, v{20+d}")
e("v_mov_b32 v19, s86")
e("s_cmp_lg_u32 s69, 0")
e("s_cbranch_scc1 L_nozero")
e("v_mov_b32 v12, 0")
set_exec("1", "0")
e("global_store_dword v28, v12, s[28:29] sc1")
full_exec()
e("s_waitcnt vmcnt(0)")
g.lab("L_nozero")
e("s_lshl_b32 s72, s68, 3")
e("s_add_u32 s72, s72, s69")
e("s_lshl_b32 s72, s72, 10")
e("v_lshlrev_b32 v9, 4, v1")
e("v_add_u32 v5, s72, v9")
e(f"global_store_dwordx4 v5, v[16:19], s[28:29] offset:{WS_Q} sc1")
e("v_mov_b32 v5, 0")
e("v_mov_b32 v6, s86")
e(f"ds_write_b32 v5, v6 offset:{NONCE_OFF}")
stamp(2)
e("s_lshl_b32 s72, s68, 13")
e("v_add_u32 v9, s72, v9")
e("s_mov_b32 s74, 0")
g.lab("L_qg")
for cc in range(8):
    if cc == 4:
        e("v_add_u32 v10, 4096, v9")
    a_ = "v9" if cc < 4 else "v10"
    e(f"global_load_dwordx4 v[{64+4*cc}:{67+4*cc}], {a_}, s[28:29] offset:{WS_Q + 1024*(cc%4)} sc1")
e("s_waitcnt vmcnt(0)")
e("v_cmp_ne_u32 vcc, s86, v67")
for cc in range(1, 8):
    e(f"v_cmp_ne_u32 s[78:79], s86, v{67+4*cc}")
    g.nop(1)
    e("s_or_b64 vcc, vcc, s[78:79]")
e("s_add_u32 s74, s74, 1")
g.nop(4)
e("s_cbranch_vccz L_qg_done")
e("s_cmp_ge_u32 s74, 0x40000")
e("s_cbranch_scc1 L_qg_done")
e("s_branch L_qg")
g.lab("L_qg_done")
for d in range(3):
    for st in (4, 2, 1):
        for k in range(st):
            e(f"v_add_f32 v{64+4*k+d}, v{64+4*k+d}, v{64+4*(k+st)+d}")
e("v_cvt_pk_bf16_f32 v64, v64, v64")
e("v_cvt_pk_bf16_f32 v65, v65, v65")
e("v_cvt_pk_bf16_f32 v66, v66, v66")
e("v_mul_u32_u24 v5, 6, v1")
e(f"ds_write_b16 v5, v64 offset:{QBF_OFF}")
e(f"ds_write_b16 v5, v65 offset:{QBF_OFF+2}")
e(f"ds_write_b16 v5, v66 offset:{QBF_OFF+4}")
e("s_waitcnt lgkmcnt(0)")
e("s_branch L_late_stream")

g.lab("L_wave_h")
g.vm = []
x_loads()
e("v_mul_u32_u24 v6, 3072, v1")
e("s_mul_i32 s72, s30, 12")
e("v_add_u32 v6, s72, v6")
e("s_mov_b32 s72, 0")
for r in range(10):
    g.vmem(f"buffer_load_dwordx3 v[{64+4*r}:{66+4*r}], v6, s[48:51], s72 offen", "w1")
    if r != 9:
        e(f"s_add_u32 s72, s72, {64*3072}")
e("s_mul_i32 s72, s30, 6")
e("v_add_u32 v6, s72, v1")
e("v_lshlrev_b32 v6, 1, v6")
g.vmem("buffer_load_ushort v15, v6, s[60:63], 0 offen", "b1")
if LATEBAR:
    g.wait_tag("b1")
e("s_barrier")
g.wait_tag("x")
x_unpack()
layernorm(None)
layernorm(Y_OFF)
e("s_waitcnt lgkmcnt(0)")
e("v_lshlrev_b32 v5, 2, v1")
for r in range(10):
    e(f"ds_read_b32 v{64+4*r+3}, v5 offset:{Y_OFF + 256*r}")
for k in range(16, 22):
    e(f"v_mov_b32 v{k}, 0")
g.wait_tag("b1")
e("s_waitcnt lgkmcnt(0)")
for r in range(10):
    rr = 64 + 4 * r
    e(f"v_lshrrev_b32 v14, 16, v{rr+3}")
    for d in range(3):
        e(f"v_dot2_f32_bf16 v{16+2*d}, v{rr+d}, v14, v{16+2*d}")
        e(f"v_dot2_f32_bf16 v{17+2*d}, v{rr+d}, v{rr+3}, v{17+2*d}")
g.nop(4)
dpp_reduce("v_add_f32", list(range(16, 22)))
e("v_mov_b32 v5, 0")
set_exec("0", "0x80000000")
e(f"ds_write_b64 v5, v[16:17] offset:{HPART_OFF}")
e(f"ds_write_b64 v5, v[18:19] offset:{HPART_OFF+8}")
e(f"ds_write_b64 v5, v[20:21] offset:{HPART_OFF+16}")
set_exec("0x3f", "0")
e("v_lshlrev_b32 v5, 2, v1")
e("s_waitcnt lgkmcnt(0)")
e(f"ds_read_b32 v40, v5 offset:{HPART_OFF}")
e("s_waitcnt lgkmcnt(0)")
rnd(40, 40)
e("v_lshlrev_b32 v41, 16, v15")
e("v_add_f32 v40, v40, v41")
rnd(40, 40)
e("v_mul_f32 v41, v40, v40")
e(f"v_mov_b32 v42, {f32(0.044715)}")
e("v_fma_f32 v41, v41, v42, 1.0")
e("v_mul_f32 v41, v41, v40")
e(f"v_mul_f32 v41, {f32(2.0 * math.sqrt(2.0 / math.pi) * 1.4426950408889634)}, v41")
e("v_exp_f32 v41, v41")
g.nop(1)
e("v_add_f32 v41, 1.0, v41")
e("v_rcp_f32 v41, v41")
g.nop(1)
e("v_fma_f32 v40, -v40, v41, v40")
rnd(40, 40)
e(f"ds_write_b32 v5, v40 offset:{H_OFF}")
full_exec()
e("s_waitcnt vmcnt(0) lgkmcnt(0)")
g.vm = []
first_issue(True)
assert g.vm == common_vm
e("s_branch L_join")
g.lab("L_late_stream")
e("s_barrier")
e("s_setprio 0")
g.vm = []
first_issue(False)
assert g.vm == common_vm
g.lab("L_join")
stamp(3)
e("v_mov_b32 v5, 0")
e(f"ds_read_b32 v6, v5 offset:{NONCE_OFF}")
e("v_lshrrev_b32 v5, 4, v1")
e("v_lshlrev_b32 v5, 1, v5")
e("v_and_b32 v7, 1, v1")
e("v_add_u32 v5, v5, v7")
e("v_lshlrev_b32 v5, 4, v5")
for j in range(3):
    e(f"ds_read_b128 v[{16+4*j}:{19+4*j}], v5 offset:{QBF_OFF + 128*j}")
e("v_lshrrev_b32 v5, 5, v1")
e("v_lshlrev_b32 v5, 2, v5")
for k in range(56, 62):
    e(f"v_mov_b32 v{k}, 0")
e("s_waitcnt lgkmcnt(0)")
e("v_readfirstlane_b32 s86, v6")
g.nop(3)
e(f"s_mov_b32 s77, {f32(-1.0e30)}")
e("v_mov_b32 v12, 0")

CPOS = 16
for o in OPTS:
    if o.startswith("cpos"):
        CPOS = int(o[4:])
def claim(n):
    if STATIC:
        return
    set_exec("1", "0")
    g.vmem("global_atomic_add v30, v28, v29, s[%s] sc0 sc1" % ("26:27" if "streamonly" in OPTS else "28:29"), f"C{n}")
    full_exec()
def body(n):
    if n == 0 or CPOS < 0:
        claim(n)
    for half in range(2):
        for bb in range(4):
            b = 4 * half + bb
            g.wait_tag(f"K{n}_{3*b+2}")
            for j in range(3):
                r = 64 + 4 * (3 * b + j)
                c = "0" if j == 0 else f"v[{40+4*bb}:{43+4*bb}]"
                e(f"v_mfma_f32_16x16x32_bf16 v[{40+4*bb}:{43+4*bb}], v[{16+4*j}:{19+4*j}], v[{r}:{r+3}], {c}")
        g.nop(10)
        for bb in range(4):
            e(f"v_cndmask_b32 v{40+4*bb}, v{40+4*bb}, v{41+4*bb}, s[20:21]")
        g.nop(1)
        for bb in range(4):
            e(f"v_add_f32_dpp v{41+4*bb}, v{40+4*bb}, v{40+4*bb} row_ror:8 row_mask:0xf bank_mask:0xf")
        for bb in range(4):
            b = 4 * half + bb
            if b == 0:
                e("v_mov_b32 v62, v41")
            else:
                e(f"v_cndmask_b32 v62, v62, v{41+4*bb}, s[{4+2*b}:{5+2*b}]")
    rnd(62, 62)
    e(f"v_mul_f32 v62, {SCALE}, v62")
    rnd(62, 62)
    e("v_mov_b32 v63, v62")
    reduce_to_sgpr("v_max_f32", 63, 76)
    e("v_mov_b32 v6, s76")
    e("v_max_f32 v6, s77, v6")
    g.nop(1)
    e("v_readfirstlane_b32 s78, v6")
    e("v_sub_f32 v6, s77, v6")
    e(f"v_mul_f32 v6, {LOG2E}, v6")
    e("v_exp_f32 v6, v6")
    e("s_mov_b32 s77, s78")
    g.nop(2)
    e("v_subrev_f32 v62, s77, v62")
    e(f"v_mul_f32 v62, {LOG2E}, v62")
    e("v_exp_f32 v62, v62")
    for k in range(56, 62):
        e(f"v_mul_f32 v{k}, v{k}, v6")
    e("v_fma_f32 v12, v12, v6, v62")
    rnd(62, 62)
    if STATIC:
        e("s_add_u32 s31, s31, 8")
    else:
        g.wait_tag(f"C{n}")
        e("v_readfirstlane_b32 s31, v30")
        g.nop(3)
        e("s_add_u32 s31, s31, 64")
    e("s_mul_i32 s23, s31, 24576")
    e("s_add_u32 s23, s23, s73")
    e("s_cmp_lt_u32 s31, %s" % ("s24" if STATIC else "128"))
    e("s_cselect_b32 s23, s23, 0x7f000000")
    k_issue(n + 1, 23)
    for i in range(24):
        e(f"ds_bpermute_b32 v{vslot(n, i)+3}, v5, v62 offset:{8*i}")
        if i % 8 == 7:
            e("s_waitcnt lgkmcnt(0)")
    for i in range(32):
        r = vslot(n, i)
        if i == CPOS:
            claim(n + 1)
        if i == 24:
            e("s_waitcnt lgkmcnt(0)")
        if i % 2 == 0:
            g.wait_tag(f"V{n}_{i+1}")
        e(f"v_lshrrev_b32 v14, 16, v{r+3}")
        for d in range(3):
            e(f"v_dot2_f32_bf16 v{56+2*d}, v{r+d}, v14, v{56+2*d}")
            e(f"v_dot2_f32_bf16 v{57+2*d}, v{r+d}, v{r+3}, v{57+2*d}")
        if i < 8:
            v_issue(n, i + 24, 22)
            e(f"ds_bpermute_b32 v{r+3}, v5, v62 offset:{8*(i+24)}")
        else:
            v_issue(n + 1, i - 8, 23)
    e("s_mov_b32 s22, s23")
    e("s_cmp_ge_u32 s31, %s" % ("s24" if STATIC else "128"))
    e("s_cbranch_scc1 L_tiles_done")

bodies = []
for n in range(7):
    st = len(g.L)
    body(n)
    bodies.append(g.L[st:])
    del g.L[st:]
import re as _re
def _norm(lines):
    return [_re.sub(r"", "", x) for x in lines]
for n in (1, 2, 3):
    assert _norm(bodies[n]) == _norm(bodies[n + 3]), n
g.L += bodies[0]
g.lab("L_body1")
g.L += bodies[1] + bodies[2] + bodies[3]
e("s_branch L_body1")
g.lab("L_tiles_done")
e("s_waitcnt vmcnt(0)")
if STATIC:
    e("s_load_dwordx2 s[24:25], s[0:1], 80")
    e("s_waitcnt lgkmcnt(0)")
e("v_lshrrev_b32 v9, 3, v0")
e("v_and_b32 v9, 31, v9")
e("v_lshlrev_b32 v9, 3, v9")
e("v_mov_b32 v135, v9")
e("global_load_dword v137, v9, s[26:27] sc1")
e("v_mov_b32 v7, 52429")
e("v_mul_u32_u24 v7, v0, v7")
e("v_lshrrev_b32 v138, 22, v7")
e("v_mul_u32_u24 v8, 80, v138")
e("v_sub_u32 v139, v0, v8")
stamp(7)
if "streamonly" in OPTS:
    e("s_branch L_fin")

reduce_to_sgpr("v_add_f32", 12, 79)
e(f"ds_write_b64 v13, v[56:57] offset:{QPART_OFF}")
e(f"ds_write_b64 v13, v[58:59] offset:{QPART_OFF+8}")
e(f"ds_write_b64 v13, v[60:61] offset:{QPART_OFF+16}")
e("v_mov_b32 v6, s77")
e("v_mov_b32 v7, s79")
e("s_lshl_b32 s72, s70, 3")
e("v_mov_b32 v5, s72")
set_exec("1", "0")
e(f"ds_write_b64 v5, v[6:7] offset:{ML_OFF}")
full_exec()
e("s_waitcnt lgkmcnt(0)")
e("s_barrier")
e("s_cmp_ge_u32 s70, 3")
e("s_cbranch_scc1 L_comb_done")
e("v_mov_b32 v5, 0")
for w in range(8):
    e(f"ds_read_b64 v[{40+2*w}:{41+2*w}], v5 offset:{ML_OFF + 8*w}")
e("v_lshlrev_b32 v5, 2, v0")
for k in range(16):
    e(f"ds_read_b32 v{64+k}, v5 offset:{QPART_OFF + 768*k}")
e("s_waitcnt lgkmcnt(0)")
e("v_max_f32 v6, v40, v42")
for w in range(2, 8):
    e(f"v_max_f32 v6, v6, v{40+2*w}")
for w in range(8):
    e(f"v_sub_f32 v{40+2*w}, v{40+2*w}, v6")
    e(f"v_mul_f32 v{40+2*w}, {LOG2E}, v{40+2*w}")
    e(f"v_exp_f32 v{40+2*w}, v{40+2*w}")
g.nop(1)
e("v_mul_f32 v7, v40, v41")
for w in range(1, 8):
    e(f"v_fma_f32 v7, v{40+2*w}, v{41+2*w}, v7")
for w in range(8):
    e(f"v_add_f32 v{64+2*w}, v{64+2*w}, v{65+2*w}")
e("v_mul_f32 v8, v40, v64")
for w in range(1, 8):
    e(f"v_fma_f32 v8, v{40+2*w}, v{64+2*w}, v8")
e(f"ds_write_b32 v5, v8 offset:{OSUM_OFF}")
e("s_cmp_lg_u32 s70, 0")
e("s_cbranch_scc1 L_comb_done")
set_exec("1", "0")
e(f"ds_write_b64 v5, v[6:7] offset:{OSUM_OFF+768}")
full_exec()
g.lab("L_comb_done")
e("s_waitcnt lgkmcnt(0)")
e("s_barrier")
e("s_lshl_b32 s72, s68, 3")
e("s_add_u32 s72, s72, s69")
e("s_lshl_b32 s72, s72, 11")
e(f"s_add_u32 s72, s72, {WS_O}")
e("s_cmp_gt_u32 s70, 1")
e("s_cbranch_scc1 L_opub_done")
e("v_mul_u32_u24 v5, 12, v0")
e(f"ds_read_b32 v40, v5 offset:{OSUM_OFF}")
e(f"ds_read_b32 v41, v5 offset:{OSUM_OFF+4}")
e(f"ds_read_b32 v42, v5 offset:{OSUM_OFF+8}")
e("v_mov_b32 v43, s86")
e("v_lshlrev_b32 v6, 4, v0")
e("v_add_u32 v6, s72, v6")
e("s_cmp_eq_u32 s70, 0")
e("s_cbranch_scc1 L_opub_st")
set_exec("1", "0")
g.lab("L_opub_st")
e("s_waitcnt lgkmcnt(0)")
e("global_store_dwordx4 v6, v[40:43], s[28:29] sc1")
full_exec()
g.lab("L_opub_done")
e("s_cmp_gt_u32 s70, 1")
e("s_cbranch_scc1 L_og_done")
e("s_lshl_b32 s72, s68, 14")
e(f"s_add_u32 s72, s72, {WS_O}")
e("s_cmp_eq_u32 s70, 1")
e("s_cbranch_scc1 L_og_ml")
e("v_lshrrev_b32 v6, 3, v1")
e("v_lshlrev_b32 v9, 11, v6")
e("v_and_b32 v7, 7, v1")
e("s_lshl_b32 s74, s69, 3")
e("v_add_u32 v8, s74, v7")
e("v_lshlrev_b32 v8, 4, v8")
e("v_add_u32 v9, v9, v8")
e("v_add_u32 v9, s72, v9")
poll_granule(40, 9, 0, "s86")
e("v_mul_u32_u24 v5, 96, v6")
e("v_mul_u32_u24 v7, 12, v7")
e("v_add_u32 v5, v5, v7")
e(f"ds_write_b32 v5, v40 offset:{OG_OFF}")
e(f"ds_write_b32 v5, v41 offset:{OG_OFF+4}")
e(f"ds_write_b32 v5, v42 offset:{OG_OFF+8}")
e("s_branch L_og_done")
g.lab("L_og_ml")
set_exec("0xff", "0")
e("v_lshlrev_b32 v9, 11, v1")
e("v_add_u32 v9, s72, v9")
poll_granule(40, 9, 1024, "s86")
e("v_lshlrev_b32 v5, 3, v1")
e(f"ds_write_b64 v5, v[40:41] offset:{OG_OFF+768}")
full_exec()
g.lab("L_og_done")
e("s_waitcnt lgkmcnt(0)")
e("s_barrier")
e("s_cmp_lg_u32 s70, 0")
e("s_cbranch_scc1 L_ofin_done")
set_exec("0xffffff", "0")
e("v_mov_b32 v5, 0")
for w in range(8):
    e(f"ds_read_b64 v[{40+2*w}:{41+2*w}], v5 offset:{OG_OFF + 768 + 8*w}")
e("v_lshlrev_b32 v5, 2, v1")
for w in range(8):
    e(f"ds_read_b32 v{64+w}, v5 offset:{OG_OFF + 96*w}")
e("s_waitcnt lgkmcnt(0)")
e("v_max_f32 v6, v40, v42")
for w in range(2, 8):
    e(f"v_max_f32 v6, v6, v{40+2*w}")
for w in range(8):
    e(f"v_sub_f32 v{40+2*w}, v{40+2*w}, v6")
    e(f"v_mul_f32 v{40+2*w}, {LOG2E}, v{40+2*w}")
    e(f"v_exp_f32 v{40+2*w}, v{40+2*w}")
g.nop(1)
e("v_mul_f32 v7, v40, v41")
for w in range(1, 8):
    e(f"v_fma_f32 v7, v{40+2*w}, v{41+2*w}, v7")
e("v_mul_f32 v8, v40, v64")
for w in range(1, 8):
    e(f"v_fma_f32 v8, v{40+2*w}, v{64+w}, v8")
e("v_rcp_f32 v7, v7")
g.nop(1)
e("v_mul_f32 v8, v8, v7")
rnd(8, 8)
e(f"ds_write_b32 v5, v8 offset:{OFIN_OFF}")
full_exec()
e("s_waitcnt lgkmcnt(0)")
g.lab("L_ofin_done")
e("s_barrier")
stamp(8)
e("v_lshlrev_b32 v5, 4, v138")
e(f"ds_read_b128 v[6:9], v5 offset:{OFIN_OFF}")
e("v_lshlrev_b32 v5, 2, v138")
e(f"ds_read_b32 v10, v5 offset:{H_OFF}")
for k in range(40, 56):
    e(f"v_mov_b32 v{k}, 0")
e("s_mul_i32 s74, s70, 5120")
e(f"s_add_u32 s74, s74, {WBUF_OFF}")
e("v_lshlrev_b32 v5, 4, v1")
e("v_add_u32 v5, s74, v5")
e("s_waitcnt vmcnt(0)")
for i in range(4):
    e(f"ds_read_b128 v[{144+4*i}:{147+4*i}], v5 offset:{1024*i}")
e("ds_read_b128 v[140:143], v5 offset:4096")
e("s_waitcnt vmcnt(0) lgkmcnt(0)")
for i in range(4):
    e(f"v_lshrrev_b32 v14, 16, v{6+i}")
    for d in range(4):
        e(f"v_dot2_f32_bf16 v{40+2*d}, v{144+4*i+d}, v14, v{40+2*d}")
        e(f"v_dot2_f32_bf16 v{41+2*d}, v{144+4*i+d}, v{6+i}, v{41+2*d}")
e("v_lshrrev_b32 v14, 16, v10")
for d in range(4):
    e(f"v_dot2_f32_bf16 v{48+2*d}, v{140+d}, v14, v{48+2*d}")
    e(f"v_dot2_f32_bf16 v{49+2*d}, v{140+d}, v10, v{49+2*d}")
e("v_mul_u32_u24 v5, 2560, v138")
e("v_lshlrev_b32 v6, 5, v139")
e("v_add_u32 v5, v5, v6")
e("v_cmp_gt_u32 vcc, 480, v0")
e("s_and_saveexec_b64 s[78:79], vcc")
g.nop(2)
e(f"ds_write_b128 v5, v[40:43] offset:{S2_OFF}")
e(f"ds_write_b128 v5, v[44:47] offset:{S2_OFF+16}")
e(f"ds_write_b128 v5, v[48:51] offset:{S2_OFF+15360}")
e(f"ds_write_b128 v5, v[52:55] offset:{S2_OFF+15360+16}")
full_exec()
e("s_waitcnt lgkmcnt(0)")
e("s_barrier")
e("v_cmp_le_u32 vcc, 214, v0")
e("v_subrev_u32 v6, 214, v0")
g.nop(1)
e("v_cndmask_b32 v6, v0, v6, vcc")
e("v_cndmask_b32 v7, 0, 1, vcc")
e("v_mul_u32_u24 v5, 15360, v7")
e("v_mul_u32_u24 v8, 12, v6")
e("v_add_u32 v5, v5, v8")
e("v_cmp_gt_u32 vcc, 428, v0")
e("s_and_saveexec_b64 s[78:79], vcc")
e("s_cbranch_execz L_s2_done")
for rg in range(6):
    for k in range(3):
        e(f"ds_read_b32 v{40+4*rg+k}, v5 offset:{S2_OFF + 2560*rg + 4*k}")
e("s_waitcnt lgkmcnt(0)")
for rg in range(1, 6):
    for k in range(3):
        e(f"v_add_f32 v{40+k}, v{40+k}, v{40+4*rg+k}")
e("v_mov_b32 v43, s86")
e("v_mul_u32_u24 v9, 3424, v7")
e("v_lshlrev_b32 v8, 4, v6")
e("v_add_u32 v9, v9, v8")
e("s_lshl_b32 s72, s2, 13")
e(f"s_add_u32 s72, s72, {WS_S}")
e("v_add_u32 v9, s72, v9")
e("global_store_dwordx4 v9, v[40:43], s[28:29] sc1")
g.lab("L_s2_done")
full_exec()
e("s_cmp_ge_u32 s2, 214")
e("s_cbranch_scc1 L_fin")
e("v_lshrrev_b32 v7, 8, v0")
e("v_and_b32 v6, 255, v0")
e("v_lshlrev_b32 v6, 13, v6")
e("v_mul_u32_u24 v9, 3424, v7")
e("v_add_u32 v9, v9, v6")
e("s_lshl_b32 s72, s2, 4")
e(f"s_add_u32 s72, s72, {WS_S}")
e("v_add_u32 v9, s72, v9")
e("s_mul_i32 s72, s2, 3")
e("v_add_u32 v5, s72, v1")
e("v_lshlrev_b32 v5, 1, v5")
e("buffer_load_ushort v44, v5, s[56:59], 0 offen")
e("buffer_load_ushort v45, v5, s[64:67], 0 offen")
e("s_mov_b32 s74, 0")
g.lab("L_fpoll")
e("global_load_dwordx4 v[40:43], v9, s[28:29] sc1")
e("s_waitcnt vmcnt(0)")
e("v_cmp_ne_u32 vcc, v137, v43")
e("v_cmp_eq_u32 s[78:79], 0, v137")
e("s_add_u32 s74, s74, 1")
g.nop(4)
e("s_or_b64 vcc, vcc, s[78:79]")
g.nop(4)
e("s_cbranch_vccz L_fpoll_done")
e("s_cmp_ge_u32 s74, 0x40000")
e("s_cbranch_scc1 L_fpoll_done")
e("s_sleep 1")
e("global_load_dword v137, v135, s[26:27] sc1")
e("s_branch L_fpoll")
g.lab("L_fpoll_done")
stamp(9)
dpp_reduce("v_add_f32", [40, 41, 42])
e("s_lshl_b32 s72, s70, 4")
e("v_mov_b32 v6, s72")
set_exec("0", "0x80000000")
e(f"ds_write_b128 v6, v[40:43] offset:{RED_OFF}")
full_exec()
e("s_waitcnt lgkmcnt(0)")
e("s_barrier")
e("s_cmp_lg_u32 s70, 0")
e("s_cbranch_scc1 L_fin")
set_exec("0x7", "0")
e("v_lshlrev_b32 v6, 2, v1")
for w in range(8):
    e(f"ds_read_b32 v{48+w}, v6 offset:{RED_OFF + 16*w}")
e("s_waitcnt lgkmcnt(0)")
e("v_add_f32 v48, v48, v49")
e("v_add_f32 v50, v50, v51")
e("v_add_f32 v48, v48, v50")
e("v_add_f32 v52, v52, v53")
e("v_add_f32 v54, v54, v55")
e("v_add_f32 v52, v52, v54")
rnd(48, 48)
rnd(52, 52)
e("v_lshlrev_b32 v45, 16, v45")
e("v_add_f32 v52, v52, v45")
rnd(52, 52)
e(f"v_mul_f32 v53, {f32(-1.4426950408889634)}, v52")
e("v_exp_f32 v53, v53")
g.nop(1)
e("v_add_f32 v53, 1.0, v53")
e("v_rcp_f32 v53, v53")
g.nop(1)
e("v_mul_f32 v52, v52, v53")
rnd(52, 52)
e("v_mul_f32 v48, v48, v52")
rnd(48, 48)
e("v_lshlrev_b32 v44, 16, v44")
e("v_add_f32 v48, v44, v48")
e("v_cvt_pk_bf16_f32 v48, v48, v48")
e("v_cmp_gt_u32 vcc, 1280, v5")
e("s_and_saveexec_b64 s[78:79], vcc")
e("s_cbranch_execz L_nostore")
e("global_store_short v5, v48, s[24:25]")
g.lab("L_nostore")
full_exec()
g.lab("L_fin")
if STAMPS:
    stamp(10)
    e("s_lshl_b32 s72, s2, 3")
    e("s_add_u32 s72, s72, s70")
    e("s_lshl_b32 s72, s72, 6")
    e(f"s_add_u32 s72, s72, {WS_STAMP}")
    e("v_mov_b32 v5, s72")
    set_exec("1", "0")
    for i in range(11):
        e(f"v_mov_b32 v6, s{88+i}")
        e(f"global_store_dword v5, v6, s[28:29] offset:{4*i}")
        e("s_waitcnt vmcnt(0)")
    full_exec()
g.lab("L_end")
e("s_endpgm")

hdr = open(f"cdna_kernels/{NAME}.s.ref").read().split("; Override launch")[0]
txt = hdr + f"""; Override launch geometry by editing the next line (default: block=256,
; grid=ceil(out_elems/256), lds=0). Harness parses it; keep it on one line.
; @launch grid=(256,1,1) block=(512,1,1) lds={LDS_BYTES}
.amdgcn_target "amdgcn-amd-amdhsa--gfx950"
.text
.globl {NAME}_kernel
.p2align 8
.type {NAME}_kernel,@function
{NAME}_kernel:
""" + "\n".join(g.L) + f"""
.section .rodata,"a"
.p2align 6
.amdhsa_kernel {NAME}_kernel
  .amdhsa_next_free_vgpr 256
  .amdhsa_next_free_sgpr 102
  .amdhsa_accum_offset 256
  .amdhsa_group_segment_fixed_size 0
  .amdhsa_kernarg_size 104
  .amdhsa_user_sgpr_count 2
  .amdhsa_user_sgpr_kernarg_segment_ptr 1
  .amdhsa_system_sgpr_workgroup_id_x 1
.end_amdhsa_kernel
"""
open(OUT, "w").write(txt)
print("wrote", OUT, len(g.L), "lines")
```

```python
import struct, sys, math

NAME = "recurrent_scan__gqa_block_cached__mixer_channel_mlp__decode"
OUT = sys.argv[1] if len(sys.argv) > 1 else f"cdna_kernels/{NAME}.s"
OPTS = set(sys.argv[2:])
NT = "nont" not in OPTS
STAMPS = "stamps" in OPTS

def f32(x):
    return "0x%08x" % struct.unpack("<I", struct.pack("<f", x))[0]

LOG2E = f32(1.4426950408889634)
SCALE = f32(192 ** -0.5)
INV640 = f32(1.0 / 640.0)
EPS = f32(1e-5)

XN_OFF = 0
Y_OFF = 2560
QPART_OFF = 5120
HPART_OFF = 17408
QBF_OFF = 17664
H_OFF = 18048
ML_OFF = 18080
OFIN_OFF = 18144
RED_OFF = 18240
NONCE_OFF = 18400
OSUM_OFF = 18432
OG_OFF = 19456
S2_OFF = 20480
LBUF_OFF = 20480
NLDS = 0
for o in OPTS:
    if o.startswith("lds"):
        NLDS = int(o[3:])
LDS_BYTES = max(S2_OFF + 2 * 6 * 2560 + 64, LBUF_OFF + 8 * NLDS * 1024)
WS_Q = 0
WS_O = 0x40000
WS_S = 0x100000
WS_STAMP = 0x400000

class G:
    def __init__(s):
        s.L = []
        s.vm = []
    def e(s, t):
        s.L.append("    " + t)
    def lab(s, t):
        s.L.append(t + ":")
    def vmem(s, t, tag):
        s.e(t)
        s.vm.append(tag)
    def wait_tag(s, tag):
        idx = max(i for i, t in enumerate(s.vm) if t == tag)
        n = min(len(s.vm) - 1 - idx, 63)
        s.e(f"s_waitcnt vmcnt({n})")
    def nop(s, n):
        while n > 0:
            k = min(n, 16)
            s.e(f"s_nop {k-1}")
            n -= k

g = G()
e = g.e

def rnd(dst, src):
    e(f"v_cvt_pk_bf16_f32 v{dst}, v{src}, v{src}")
    e(f"v_and_b32 v{dst}, 0xffff0000, v{dst}")

def dpp_reduce(op, regs):
    steps = ["row_shr:1 row_mask:0xf bank_mask:0xf", "row_shr:2 row_mask:0xf bank_mask:0xf",
             "row_shr:4 row_mask:0xf bank_mask:0xf", "row_shr:8 row_mask:0xf bank_mask:0xf",
             "row_bcast:15 row_mask:0xa bank_mask:0xf", "row_bcast:31 row_mask:0xc bank_mask:0xf"]
    for st in steps:
        if len(regs) < 3:
            g.nop(2)
        for r in regs:
            e(f"{op}_dpp v{r}, v{r}, v{r} {st}")

def reduce_to_sgpr(op, r, sd):
    dpp_reduce(op, [r])
    g.nop(1)
    e(f"v_readlane_b32 s{sd}, v{r}, 63")
    g.nop(2)

def set_exec(lo, hi):
    e(f"s_mov_b32 exec_lo, {lo}")
    e(f"s_mov_b32 exec_hi, {hi}")

def full_exec():
    e("s_mov_b64 exec, -1")

ntf = " nt" if NT else ""
EARLY = "early" in OPTS
def stamp(i, early=False):
    if EARLY and i in (4, 5, 6) and not early:
        return
    if early and not EARLY:
        return
    if STAMPS:
        e("s_memrealtime s[100:101]")
        e("s_waitcnt lgkmcnt(0)")
        e(f"s_mov_b32 s{88+i}, s100")

_poll_id = [0]
def poll_granule(vdst, vaddr, ws_off, tag_src):
    n = _poll_id[0]; _poll_id[0] += 1
    e("s_mov_b32 s74, 0")
    g.lab(f"L_poll{n}")
    e(f"global_load_dwordx4 v[{vdst}:{vdst+3}], v{vaddr}, s[28:29] offset:{ws_off} sc1")
    e("s_waitcnt vmcnt(0)")
    e(f"v_cmp_ne_u32 vcc, {tag_src}, v{vdst+3}")
    e("s_add_u32 s74, s74, 1")
    g.nop(4)
    e(f"s_cbranch_vccz L_poll{n}_done")
    e("s_cmp_ge_u32 s74, 0x40000")
    e(f"s_cbranch_scc1 L_poll{n}_done")
    if "nosleep" not in OPTS:
        e("s_sleep 1")
    e(f"s_branch L_poll{n}")
    g.lab(f"L_poll{n}_done")

e("s_cmp_ge_u32 s2, 256")
e("s_cbranch_scc1 L_end")
stamp(0)
e("s_load_dwordx16 s[4:19], s[0:1], 0")
e("s_load_dwordx8 s[20:27], s[0:1], 64")
e("s_load_dwordx2 s[28:29], s[0:1], 96")
e("s_memrealtime s[86:87]")
e("v_and_b32 v1, 63, v0")
e("v_lshrrev_b32 v5, 6, v0")
g.nop(1)
e("v_readfirstlane_b32 s70, v5")
LINMAP = "linmap" in OPTS
if LINMAP:
    e("s_lshr_b32 s68, s2, 3")
    e("s_and_b32 s69, s2, 7")
else:
    e("s_and_b32 s68, s2, 7")
    e("s_lshl_b32 s68, s68, 2")
    e("s_lshr_b32 s69, s2, 3")
    e("s_and_b32 s69, s69, 3")
    e("s_add_u32 s68, s68, s69")
    e("s_lshr_b32 s69, s2, 5")
e("s_and_b32 s30, s2, 7")
e("s_lshl_b32 s30, s30, 5")
e("s_lshr_b32 s31, s2, 3")
e("s_add_u32 s30, s30, s31")
e("v_and_b32 v6, 7, v1")
e("v_mul_u32_u24 v2, 384, v6")
e("v_lshrrev_b32 v6, 3, v1")
e("v_lshlrev_b32 v6, 4, v6")
e("v_add_u32 v2, v2, v6")
e("v_lshrrev_b32 v7, 5, v1")
e("v_and_b32 v8, 31, v1")
e("v_mul_u32_u24 v3, 384, v7")
e("v_mul_u32_u24 v6, 12, v8")
e("v_add_u32 v3, v3, v6")
e("s_waitcnt lgkmcnt(0)")
def srd(base, ptr, nbytes):
    e(f"s_mov_b32 s{base}, s{ptr}")
    e(f"s_and_b32 s{base+1}, s{ptr+1}, 0xffff")
    e(f"s_mov_b32 s{base+2}, {nbytes}")
    e(f"s_mov_b32 s{base+3}, 0x00020000")
srd(56, 4, 1280)
srd(32, 6, 100663296)
srd(36, 8, 100663296)
srd(40, 10, 7864320)
srd(44, 12, 7864320)
srd(48, 16, 1966080)
srd(60, 18, 3072)
srd(52, 20, 1966080)
srd(64, 22, 1280)
for b in range(8):
    e(f"s_mov_b32 s{4+2*b}, {hex((0xff << (8*b)) & 0xffffffff) if b < 4 else 0}")
    e(f"s_mov_b32 s{5+2*b}, {hex((0xff << (8*(b-4))) & 0xffffffff) if b >= 4 else 0}")
e("s_mov_b32 s20, 0xff00ff00")
e("s_mov_b32 s21, 0xff00ff00")
e("s_mul_i32 s73, s68, 3145728")
e("s_mul_i32 s74, s69, 393216")
e("s_add_u32 s73, s73, s74")
e("s_mul_i32 s74, s70, 49152")
e("s_add_u32 s73, s73, s74")
e("s_or_b32 s86, s86, 1")
e("v_lshrrev_b32 v6, 5, v1")
e("s_lshl_b32 s72, s70, 1")
e("v_add_u32 v6, s72, v6")
e("v_mul_u32_u24 v6, 768, v6")
e("v_mul_u32_u24 v9, 24, v8")
e("v_add_u32 v13, v6, v9")
NSLOT = 48
STREAM = []
for t_ in range(2):
    STREAM += [("K", t_, i) for i in range(24)]
    STREAM += [("V", t_, i) for i in range(32)]
POS = {x: n for n, x in enumerate(STREAM)}
def slot_reg(kind, tile, idx):
    return 64 + 4 * (POS[(kind, tile, idx)] % NSLOT)
issued = [0]
lds_pending = [False]
def lds_prefetch():
    if NLDS == 0:
        return
    e(f"s_mul_i32 s74, s70, {NLDS*1024}")
    e(f"s_add_u32 s74, s74, {LBUF_OFF}")
    for i in range(NLDS):
        b, j = divmod(i, 3)
        e(f"s_add_u32 s72, s73, {24576 + b*3072 + 128*j}")
        e(f"s_add_u32 m0, s74, {1024*i}")
        if pacing[0] and PACE:
            e(f"s_waitcnt vmcnt({PACE-1})")
        else:
            e("s_nop 0")
        g.vmem(f"buffer_load_dwordx4 v2, s[32:35], s72 offen{ntf} lds", "KL")
PACE = 0
for o in OPTS:
    if o.startswith("pace"):
        PACE = int(o[4:])
pacing = [False]
def issue(n):
    for _ in range(n):
        if issued[0] >= len(STREAM):
            return
        if pacing[0] and PACE and len(g.vm) >= PACE:
            e(f"s_waitcnt vmcnt({PACE-1})")
        kind, tile, i = STREAM[issued[0]]
        r = 64 + 4 * (issued[0] % NSLOT)
        issued[0] += 1
        if kind == "K" and tile == 1 and i < NLDS:
            if i == 0:
                g.wait_tag("KL")
            e(f"ds_read_b128 v[{r}:{r+3}], v4 offset:{1024*i}")
            lds_pending[0] = True
        elif kind == "K":
            b, j = divmod(i, 3)
            e(f"s_add_u32 s72, s73, {tile*24576 + b*3072}")
            g.vmem(f"buffer_load_dwordx4 v[{r}:{r+3}], v2, s[32:35], s72 offen offset:{128*j}{ntf}", f"K{tile}_{i}")
        else:
            e(f"s_add_u32 s72, s73, {tile*24576 + i*768}")
            g.vmem(f"buffer_load_dwordx3 v[{r}:{r+2}], v3, s[36:39], s72 offen{ntf}", f"V{tile}_{i}")
def x_loads():
    e("v_lshlrev_b32 v5, 2, v1")
    for r in range(5):
        g.vmem(f"buffer_load_dword v{47+r}, v5, s[56:59], 0 offen offset:{256*r}", "x")
def x_unpack():
    for r in range(5):
        e(f"v_lshlrev_b32 v{52+2*r}, 16, v{47+r}")
        e(f"v_and_b32 v{53+2*r}, 0xffff0000, v{47+r}")
def layernorm(lds_off):
    e("v_add_f32 v43, v52, v53")
    for k in range(54, 62):
        e(f"v_add_f32 v43, v43, v{k}")
    reduce_to_sgpr("v_add_f32", 43, 74)
    e(f"v_mov_b32 v62, {INV640}")
    e("v_mul_f32 v62, s74, v62")
    e("v_sub_f32 v63, v52, v62")
    e("v_mul_f32 v43, v63, v63")
    for k in range(53, 62):
        e(f"v_sub_f32 v63, v{k}, v62")
        e("v_fma_f32 v43, v63, v63, v43")
    reduce_to_sgpr("v_add_f32", 43, 74)
    e(f"v_mov_b32 v63, {INV640}")
    e("v_mul_f32 v63, s74, v63")
    rnd(62, 62)
    rnd(63, 63)
    e(f"v_add_f32 v63, {EPS}, v63")
    rnd(63, 63)
    e("v_sqrt_f32 v63, v63")
    g.nop(1)
    rnd(63, 63)
    e("v_rcp_f32 v63, v63")
    g.nop(1)
    for k in range(52, 62):
        e(f"v_sub_f32 v{k}, v{k}, v62")
        rnd(k, k)
        e(f"v_mul_f32 v{k}, v{k}, v63")
        rnd(k, k)
    if lds_off is not None:
        e("v_lshlrev_b32 v5, 3, v1")
        for r in range(5):
            e(f"ds_write_b64 v5, v[{52+2*r}:{53+2*r}] offset:{lds_off + 512*r}")

if "streamonly" not in OPTS:
    e("s_cmp_eq_u32 s70, 0")
    e("s_cbranch_scc1 L_wave_q")
    e("s_cmp_eq_u32 s70, 1")
    e("s_cbranch_scc1 L_wave_h")
g.vm = []
e("s_barrier")
issued[0] = 0
INIT = NSLOT
for o in OPTS:
    if o.startswith("init"):
        INIT = int(o[4:])
pacing[0] = True
issue(INIT)
lds_prefetch()
pacing[0] = False
if "nobar" not in OPTS:
    e("s_barrier")
issue(NSLOT - INIT)
common_vm = list(g.vm)
e("s_branch L_join")

g.lab("L_wave_q")
if "noprio" not in OPTS:
    e("s_setprio 3")
g.vm = []
x_loads()
e("s_mul_i32 s71, s69, 80")
e("v_add_u32 v4, s71, v7")
e("v_mov_b32 v9, 12288")
e("v_mul_lo_u32 v4, v4, v9")
e("v_mul_u32_u24 v6, 12, v8")
e("v_add_u32 v4, v4, v6")
e("s_mul_i32 s72, s68, 384")
e("v_add_u32 v4, s72, v4")
e("s_mov_b32 s72, 0")
for i in range(40):
    r = 64 + 4 * i
    g.vmem(f"buffer_load_dwordx3 v[{r}:{r+2}], v4, s[40:43], s72 offen", f"wq{i//10}")
    if i != 39:
        e("s_add_u32 s72, s72, 24576")
e("s_lshl_b32 s72, s68, 3")
e("v_mov_b32 v9, s72")
e("v_mov_b32 v10, s86")
e("v_mov_b32 v11, 0")
set_exec("1", "0")
g.vmem("global_atomic_cmpswap v12, v9, v[10:11], s[26:27] sc0 sc1", "nonce")
full_exec()
e("s_barrier")
stamp(5, True)
g.wait_tag("x")
stamp(6, True)
x_unpack()
layernorm(XN_OFF)
e("s_waitcnt lgkmcnt(0)")
stamp(1)
for k in range(56, 62):
    e(f"v_mov_b32 v{k}, 0")
e("v_lshrrev_b32 v5, 5, v1")
e("v_add_u32 v5, s71, v5")
e("v_lshlrev_b32 v5, 2, v5")
for i in range(40):
    e(f"ds_read_b32 v{64+4*i+3}, v5 offset:{XN_OFF + 8*i}")
e("s_waitcnt lgkmcnt(0)")
for i in range(40):
    if i % 10 == 0:
        g.wait_tag(f"wq{i//10}")
    r = 64 + 4 * i
    e(f"v_lshrrev_b32 v14, 16, v{r+3}")
    for d in range(3):
        e(f"v_dot2_f32_bf16 v{56+2*d}, v{r+d}, v14, v{56+2*d}")
        e(f"v_dot2_f32_bf16 v{57+2*d}, v{r+d}, v{r+3}, v{57+2*d}")
g.nop(3)
e(f"ds_write_b64 v13, v[56:57] offset:{QPART_OFF}")
e(f"ds_write_b64 v13, v[58:59] offset:{QPART_OFF+8}")
e(f"ds_write_b64 v13, v[60:61] offset:{QPART_OFF+16}")
e("v_mul_u32_u24 v5, 12, v1")
e("s_waitcnt lgkmcnt(0)")
for d in range(3):
    e(f"ds_read_b32 v{16+d}, v5 offset:{QPART_OFF + 4*d}")
    e(f"ds_read_b32 v{20+d}, v5 offset:{QPART_OFF + 768 + 4*d}")
g.wait_tag("nonce")
e("v_readfirstlane_b32 s87, v12")
g.nop(3)
e("s_cmp_eq_u32 s87, 0")
e("s_cselect_b32 s86, s86, s87")
e("s_waitcnt lgkmcnt(0)")
for d in range(3):
    e(f"v_add_f32 v{16+d}, v{16+d}, v{20+d}")
e("v_mov_b32 v19, s86")
e("s_lshl_b32 s72, s68, 3")
e("s_add_u32 s72, s72, s69")
e("s_lshl_b32 s72, s72, 10")
e("v_lshlrev_b32 v9, 4, v1")
e("v_add_u32 v5, s72, v9")
e(f"global_store_dwordx4 v5, v[16:19], s[28:29] offset:{WS_Q} sc1")
e("v_mov_b32 v5, 0")
e("v_mov_b32 v6, s86")
e(f"ds_write_b32 v5, v6 offset:{NONCE_OFF}")
stamp(2)
e("s_lshl_b32 s72, s68, 13")
e("v_add_u32 v9, s72, v9")
e("s_mov_b32 s74, 0")
g.lab("L_qg")
for cc in range(8):
    if cc == 4:
        e("v_add_u32 v10, 4096, v9")
    a_ = "v9" if cc < 4 else "v10"
    e(f"global_load_dwordx4 v[{64+4*cc}:{67+4*cc}], {a_}, s[28:29] offset:{WS_Q + 1024*(cc%4)} sc1")
e("s_waitcnt vmcnt(0)")
e("v_cmp_ne_u32 vcc, s86, v67")
for cc in range(1, 8):
    e(f"v_cmp_ne_u32 s[78:79], s86, v{67+4*cc}")
    g.nop(1)
    e("s_or_b64 vcc, vcc, s[78:79]")
e("s_add_u32 s74, s74, 1")
g.nop(4)
e("s_cbranch_vccz L_qg_done")
e("s_cmp_ge_u32 s74, 0x40000")
e("s_cbranch_scc1 L_qg_done")
e("s_branch L_qg")
g.lab("L_qg_done")
for d in range(3):
    for st in (4, 2, 1):
        for k in range(st):
            e(f"v_add_f32 v{64+4*k+d}, v{64+4*k+d}, v{64+4*(k+st)+d}")
e("v_cvt_pk_bf16_f32 v64, v64, v64")
e("v_cvt_pk_bf16_f32 v65, v65, v65")
e("v_cvt_pk_bf16_f32 v66, v66, v66")
e("v_mul_u32_u24 v5, 6, v1")
e(f"ds_write_b16 v5, v64 offset:{QBF_OFF}")
e(f"ds_write_b16 v5, v65 offset:{QBF_OFF+2}")
e(f"ds_write_b16 v5, v66 offset:{QBF_OFF+4}")
e("s_waitcnt lgkmcnt(0)")
e("s_branch L_late_stream")

g.lab("L_wave_h")
g.vm = []
x_loads()
e("v_mul_u32_u24 v6, 3072, v1")
e("s_mul_i32 s72, s30, 12")
e("v_add_u32 v6, s72, v6")
e("s_mov_b32 s72, 0")
for r in range(10):
    g.vmem(f"buffer_load_dwordx3 v[{64+4*r}:{66+4*r}], v6, s[48:51], s72 offen", "w1")
    if r != 9:
        e(f"s_add_u32 s72, s72, {64*3072}")
e("s_mul_i32 s72, s30, 6")
e("v_add_u32 v6, s72, v1")
e("v_lshlrev_b32 v6, 1, v6")
g.vmem("buffer_load_ushort v15, v6, s[60:63], 0 offen", "b1")
e("s_barrier")
g.wait_tag("x")
x_unpack()
layernorm(None)
layernorm(Y_OFF)
e("s_waitcnt lgkmcnt(0)")
e("v_lshlrev_b32 v5, 2, v1")
for r in range(10):
    e(f"ds_read_b32 v{64+4*r+3}, v5 offset:{Y_OFF + 256*r}")
for k in range(16, 22):
    e(f"v_mov_b32 v{k}, 0")
g.wait_tag("b1")
e("s_waitcnt lgkmcnt(0)")
for r in range(10):
    rr = 64 + 4 * r
    e(f"v_lshrrev_b32 v14, 16, v{rr+3}")
    for d in range(3):
        e(f"v_dot2_f32_bf16 v{16+2*d}, v{rr+d}, v14, v{16+2*d}")
        e(f"v_dot2_f32_bf16 v{17+2*d}, v{rr+d}, v{rr+3}, v{17+2*d}")
g.nop(4)
dpp_reduce("v_add_f32", list(range(16, 22)))
e("v_mov_b32 v5, 0")
set_exec("0", "0x80000000")
e(f"ds_write_b64 v5, v[16:17] offset:{HPART_OFF}")
e(f"ds_write_b64 v5, v[18:19] offset:{HPART_OFF+8}")
e(f"ds_write_b64 v5, v[20:21] offset:{HPART_OFF+16}")
set_exec("0x3f", "0")
e("v_lshlrev_b32 v5, 2, v1")
e("s_waitcnt lgkmcnt(0)")
e(f"ds_read_b32 v40, v5 offset:{HPART_OFF}")
e("s_waitcnt lgkmcnt(0)")
rnd(40, 40)
e("v_lshlrev_b32 v41, 16, v15")
e("v_add_f32 v40, v40, v41")
rnd(40, 40)
e("v_mul_f32 v41, v40, v40")
e(f"v_mov_b32 v42, {f32(0.044715)}")
e("v_fma_f32 v41, v41, v42, 1.0")
e("v_mul_f32 v41, v41, v40")
e(f"v_mul_f32 v41, {f32(2.0 * math.sqrt(2.0 / math.pi) * 1.4426950408889634)}, v41")
e("v_exp_f32 v41, v41")
g.nop(1)
e("v_add_f32 v41, 1.0, v41")
e("v_rcp_f32 v41, v41")
g.nop(1)
e("v_fma_f32 v40, -v40, v41, v40")
rnd(40, 40)
e(f"ds_write_b32 v5, v40 offset:{H_OFF}")
full_exec()
e("s_waitcnt vmcnt(0) lgkmcnt(0)")
g.vm = []
issued[0] = 0
pacing[0] = True
issue(INIT)
lds_prefetch()
pacing[0] = False
e("s_barrier")
issue(NSLOT - INIT)
assert g.vm == common_vm
e("s_branch L_join")
g.lab("L_late_stream")
e("s_barrier")
e("s_setprio 0")
g.vm = []
issued[0] = 0
issue(INIT)
lds_prefetch()
issue(NSLOT - INIT)
assert g.vm == common_vm
g.lab("L_join")
stamp(3)
e("v_mov_b32 v5, 0")
e(f"ds_read_b32 v6, v5 offset:{NONCE_OFF}")
e("v_lshrrev_b32 v5, 4, v1")
e("v_lshlrev_b32 v5, 1, v5")
e("v_and_b32 v7, 1, v1")
e("v_add_u32 v5, v5, v7")
e("v_lshlrev_b32 v5, 4, v5")
for j in range(3):
    e(f"ds_read_b128 v[{16+4*j}:{19+4*j}], v5 offset:{QBF_OFF + 128*j}")
e("v_lshrrev_b32 v5, 5, v1")
e("v_lshlrev_b32 v5, 2, v5")
for k in range(56, 62):
    e(f"v_mov_b32 v{k}, 0")
e("s_waitcnt lgkmcnt(0)")
e("v_readfirstlane_b32 s86, v6")
g.nop(3)
if NLDS:
    e(f"s_mul_i32 s74, s70, {NLDS*1024}")
    e(f"s_add_u32 s74, s74, {LBUF_OFF}")
    e("v_lshlrev_b32 v4, 4, v1")
    e("v_add_u32 v4, s74, v4")

def qk(tile):
    for half in range(2):
        for bb in range(4):
            b = 4 * half + bb
            if tile == 1 and 3 * b + 2 < NLDS:
                if lds_pending[0]:
                    e("s_waitcnt lgkmcnt(0)")
                    lds_pending[0] = False
            else:
                if tile == 1 and lds_pending[0]:
                    e("s_waitcnt lgkmcnt(0)")
                    lds_pending[0] = False
                g.wait_tag(f"K{tile}_{3*b+2}")
            for j in range(3):
                r = slot_reg("K", tile, 3 * b + j)
                c = "0" if j == 0 else f"v[{40+4*bb}:{43+4*bb}]"
                e(f"v_mfma_f32_16x16x32_bf16 v[{40+4*bb}:{43+4*bb}], v[{16+4*j}:{19+4*j}], v[{r}:{r+3}], {c}")
            issue(3)
        g.nop(10)
        for bb in range(4):
            e(f"v_cndmask_b32 v{40+4*bb}, v{40+4*bb}, v{41+4*bb}, s[20:21]")
        g.nop(1)
        for bb in range(4):
            e(f"v_add_f32_dpp v{41+4*bb}, v{40+4*bb}, v{40+4*bb} row_ror:8 row_mask:0xf bank_mask:0xf")
        for bb in range(4):
            b = 4 * half + bb
            if b == 0:
                e("v_mov_b32 v62, v41")
            else:
                e(f"v_cndmask_b32 v62, v62, v{41+4*bb}, s[{4+2*b}:{5+2*b}]")
    rnd(62, 62)
    e(f"v_mul_f32 v62, {SCALE}, v62")
    rnd(62, 62)
    e("v_mov_b32 v63, v62")
    reduce_to_sgpr("v_max_f32", 63, 76)
def softmax(tile):
    if tile == 0:
        e("s_mov_b32 s77, s76")
        e("v_subrev_f32 v62, s77, v62")
        e(f"v_mul_f32 v62, {LOG2E}, v62")
        e("v_exp_f32 v62, v62")
        g.nop(1)
        e("v_mov_b32 v12, v62")
    else:
        e("v_mov_b32 v6, s76")
        e("v_max_f32 v6, s77, v6")
        g.nop(1)
        e("v_readfirstlane_b32 s78, v6")
        e("v_sub_f32 v6, s77, v6")
        e(f"v_mul_f32 v6, {LOG2E}, v6")
        e("v_exp_f32 v6, v6")
        e("s_mov_b32 s77, s78")
        g.nop(2)
        e("v_subrev_f32 v62, s77, v62")
        e(f"v_mul_f32 v62, {LOG2E}, v62")
        e("v_exp_f32 v62, v62")
        for k in range(56, 62):
            e(f"v_mul_f32 v{k}, v{k}, v6")
        e("v_fma_f32 v12, v12, v6, v62")
    rnd(62, 62)
def pv(tile):
    for i in range(32):
        if "nocomp" in OPTS:
            break
        e(f"ds_bpermute_b32 v{slot_reg('V', tile, i)+3}, v5, v62 offset:{8*i}")
        if i % 8 == 7:
            e("s_waitcnt lgkmcnt(0)")
    for i in range(32):
        r = slot_reg("V", tile, i)
        if i % 2 == 0:
            g.wait_tag(f"V{tile}_{i+1}")
        if "nocomp" not in OPTS:
            e(f"v_lshrrev_b32 v14, 16, v{r+3}")
            for d in range(3):
                e(f"v_dot2_f32_bf16 v{56+2*d}, v{r+d}, v14, v{56+2*d}")
                e(f"v_dot2_f32_bf16 v{57+2*d}, v{r+d}, v{r+3}, v{57+2*d}")
        if i % 2 == 1:
            issue(2)

qk(0)
stamp(4)
softmax(0)
pv(0)
stamp(5)
qk(1)
stamp(6)
e("v_mov_b32 v7, 52429")
e("v_mul_u32_u24 v7, v0, v7")
e("v_lshrrev_b32 v7, 22, v7")
e("v_mul_u32_u24 v8, 80, v7")
e("v_sub_u32 v8, v0, v8")
e("v_lshlrev_b32 v9, 2, v7")
e("s_mul_i32 s72, s68, 192")
e("s_mul_i32 s74, s69, 24")
e("s_add_u32 s72, s72, s74")
e("v_add_u32 v9, s72, v9")
e("v_mul_u32_u24 v9, 1280, v9")
e("v_lshlrev_b32 v10, 4, v8")
e("v_add_u32 v9, v9, v10")
for i in range(4):
    g.vmem(f"buffer_load_dwordx4 v[{144+4*i}:{147+4*i}], v9, s[44:47], 0 offen offset:{1280*i}", "wo")
e("s_mul_i32 s72, s30, 6")
e("v_add_u32 v9, s72, v7")
e("v_mul_u32_u24 v9, 1280, v9")
e("v_add_u32 v9, v9, v10")
g.vmem("buffer_load_dwordx4 v[140:143], v9, s[52:55], 0 offen", "w2")
e("v_mov_b32 v138, v7")
e("v_mov_b32 v139, v8")
if LINMAP:
    e("v_lshrrev_b32 v9, 3, v0")
    e("v_and_b32 v9, 31, v9")
else:
    e("v_and_b32 v9, 7, v0")
    e("v_lshlrev_b32 v9, 2, v9")
    e("v_lshrrev_b32 v10, 3, v0")
    e("v_and_b32 v10, 3, v10")
    e("v_add_u32 v9, v9, v10")
e("v_lshlrev_b32 v9, 3, v9")
e("v_mov_b32 v135, v9")
g.vmem("global_load_dword v137, v9, s[26:27] sc1", "nonces")
softmax(1)
pv(1)
stamp(7)
if "streamonly" in OPTS:
    e("s_branch L_fin")

reduce_to_sgpr("v_add_f32", 12, 79)
e(f"ds_write_b64 v13, v[56:57] offset:{QPART_OFF}")
e(f"ds_write_b64 v13, v[58:59] offset:{QPART_OFF+8}")
e(f"ds_write_b64 v13, v[60:61] offset:{QPART_OFF+16}")
e("v_mov_b32 v6, s77")
e("v_mov_b32 v7, s79")
e("s_lshl_b32 s72, s70, 3")
e("v_mov_b32 v5, s72")
set_exec("1", "0")
e(f"ds_write_b64 v5, v[6:7] offset:{ML_OFF}")
full_exec()
e("s_waitcnt lgkmcnt(0)")
e("s_barrier")
e("s_cmp_ge_u32 s70, 3")
e("s_cbranch_scc1 L_comb_done")
e("v_mov_b32 v5, 0")
for w in range(8):
    e(f"ds_read_b64 v[{40+2*w}:{41+2*w}], v5 offset:{ML_OFF + 8*w}")
e("v_lshlrev_b32 v5, 2, v0")
for k in range(16):
    e(f"ds_read_b32 v{64+k}, v5 offset:{QPART_OFF + 768*k}")
e("s_waitcnt lgkmcnt(0)")
e("v_max_f32 v6, v40, v42")
for w in range(2, 8):
    e(f"v_max_f32 v6, v6, v{40+2*w}")
for w in range(8):
    e(f"v_sub_f32 v{40+2*w}, v{40+2*w}, v6")
    e(f"v_mul_f32 v{40+2*w}, {LOG2E}, v{40+2*w}")
    e(f"v_exp_f32 v{40+2*w}, v{40+2*w}")
g.nop(1)
e("v_mul_f32 v7, v40, v41")
for w in range(1, 8):
    e(f"v_fma_f32 v7, v{40+2*w}, v{41+2*w}, v7")
for w in range(8):
    e(f"v_add_f32 v{64+2*w}, v{64+2*w}, v{65+2*w}")
e("v_mul_f32 v8, v40, v64")
for w in range(1, 8):
    e(f"v_fma_f32 v8, v{40+2*w}, v{64+2*w}, v8")
e(f"ds_write_b32 v5, v8 offset:{OSUM_OFF}")
e("s_cmp_lg_u32 s70, 0")
e("s_cbranch_scc1 L_comb_done")
set_exec("1", "0")
e(f"ds_write_b64 v5, v[6:7] offset:{OSUM_OFF+768}")
full_exec()
g.lab("L_comb_done")
e("s_waitcnt lgkmcnt(0)")
e("s_barrier")
e("s_lshl_b32 s72, s68, 3")
e("s_add_u32 s72, s72, s69")
e("s_lshl_b32 s72, s72, 11")
e(f"s_add_u32 s72, s72, {WS_O}")
e("s_cmp_gt_u32 s70, 1")
e("s_cbranch_scc1 L_opub_done")
e("v_mul_u32_u24 v5, 12, v0")
e(f"ds_read_b32 v40, v5 offset:{OSUM_OFF}")
e(f"ds_read_b32 v41, v5 offset:{OSUM_OFF+4}")
e(f"ds_read_b32 v42, v5 offset:{OSUM_OFF+8}")
e("v_mov_b32 v43, s86")
e("v_lshlrev_b32 v6, 4, v0")
e("v_add_u32 v6, s72, v6")
e("s_cmp_eq_u32 s70, 0")
e("s_cbranch_scc1 L_opub_st")
set_exec("1", "0")
g.lab("L_opub_st")
e("s_waitcnt lgkmcnt(0)")
e("global_store_dwordx4 v6, v[40:43], s[28:29] sc1")
full_exec()
g.lab("L_opub_done")
e("s_cmp_gt_u32 s70, 1")
e("s_cbranch_scc1 L_og_done")
e("s_lshl_b32 s72, s68, 14")
e(f"s_add_u32 s72, s72, {WS_O}")
e("s_cmp_eq_u32 s70, 1")
e("s_cbranch_scc1 L_og_ml")
e("v_lshrrev_b32 v6, 3, v1")
e("v_lshlrev_b32 v9, 11, v6")
e("v_and_b32 v7, 7, v1")
e("s_lshl_b32 s74, s69, 3")
e("v_add_u32 v8, s74, v7")
e("v_lshlrev_b32 v8, 4, v8")
e("v_add_u32 v9, v9, v8")
e("v_add_u32 v9, s72, v9")
poll_granule(40, 9, 0, "s86")
e("v_mul_u32_u24 v5, 96, v6")
e("v_mul_u32_u24 v7, 12, v7")
e("v_add_u32 v5, v5, v7")
e(f"ds_write_b32 v5, v40 offset:{OG_OFF}")
e(f"ds_write_b32 v5, v41 offset:{OG_OFF+4}")
e(f"ds_write_b32 v5, v42 offset:{OG_OFF+8}")
e("s_branch L_og_done")
g.lab("L_og_ml")
set_exec("0xff", "0")
e("v_lshlrev_b32 v9, 11, v1")
e("v_add_u32 v9, s72, v9")
poll_granule(40, 9, 1024, "s86")
e("v_lshlrev_b32 v5, 3, v1")
e(f"ds_write_b64 v5, v[40:41] offset:{OG_OFF+768}")
full_exec()
g.lab("L_og_done")
e("s_waitcnt lgkmcnt(0)")
e("s_barrier")
e("s_cmp_lg_u32 s70, 0")
e("s_cbranch_scc1 L_ofin_done")
set_exec("0xffffff", "0")
e("v_mov_b32 v5, 0")
for w in range(8):
    e(f"ds_read_b64 v[{40+2*w}:{41+2*w}], v5 offset:{OG_OFF + 768 + 8*w}")
e("v_lshlrev_b32 v5, 2, v1")
for w in range(8):
    e(f"ds_read_b32 v{64+w}, v5 offset:{OG_OFF + 96*w}")
e("s_waitcnt lgkmcnt(0)")
e("v_max_f32 v6, v40, v42")
for w in range(2, 8):
    e(f"v_max_f32 v6, v6, v{40+2*w}")
for w in range(8):
    e(f"v_sub_f32 v{40+2*w}, v{40+2*w}, v6")
    e(f"v_mul_f32 v{40+2*w}, {LOG2E}, v{40+2*w}")
    e(f"v_exp_f32 v{40+2*w}, v{40+2*w}")
g.nop(1)
e("v_mul_f32 v7, v40, v41")
for w in range(1, 8):
    e(f"v_fma_f32 v7, v{40+2*w}, v{41+2*w}, v7")
e("v_mul_f32 v8, v40, v64")
for w in range(1, 8):
    e(f"v_fma_f32 v8, v{40+2*w}, v{64+w}, v8")
e("v_rcp_f32 v7, v7")
g.nop(1)
e("v_mul_f32 v8, v8, v7")
rnd(8, 8)
e(f"ds_write_b32 v5, v8 offset:{OFIN_OFF}")
full_exec()
e("s_waitcnt lgkmcnt(0)")
g.lab("L_ofin_done")
e("s_barrier")
stamp(8)
e("v_lshlrev_b32 v5, 4, v138")
e(f"ds_read_b128 v[6:9], v5 offset:{OFIN_OFF}")
e("v_lshlrev_b32 v5, 2, v138")
e(f"ds_read_b32 v10, v5 offset:{H_OFF}")
for k in range(40, 56):
    e(f"v_mov_b32 v{k}, 0")
e("s_waitcnt vmcnt(0) lgkmcnt(0)")
for i in range(4):
    e(f"v_lshrrev_b32 v14, 16, v{6+i}")
    for d in range(4):
        e(f"v_dot2_f32_bf16 v{40+2*d}, v{144+4*i+d}, v14, v{40+2*d}")
        e(f"v_dot2_f32_bf16 v{41+2*d}, v{144+4*i+d}, v{6+i}, v{41+2*d}")
e("v_lshrrev_b32 v14, 16, v10")
for d in range(4):
    e(f"v_dot2_f32_bf16 v{48+2*d}, v{140+d}, v14, v{48+2*d}")
    e(f"v_dot2_f32_bf16 v{49+2*d}, v{140+d}, v10, v{49+2*d}")
e("v_mul_u32_u24 v5, 2560, v138")
e("v_lshlrev_b32 v6, 5, v139")
e("v_add_u32 v5, v5, v6")
e("v_cmp_gt_u32 vcc, 480, v0")
e("s_and_saveexec_b64 s[78:79], vcc")
g.nop(2)
e(f"ds_write_b128 v5, v[40:43] offset:{S2_OFF}")
e(f"ds_write_b128 v5, v[44:47] offset:{S2_OFF+16}")
e(f"ds_write_b128 v5, v[48:51] offset:{S2_OFF+15360}")
e(f"ds_write_b128 v5, v[52:55] offset:{S2_OFF+15360+16}")
full_exec()
e("s_waitcnt lgkmcnt(0)")
e("s_barrier")
e("v_cmp_le_u32 vcc, 214, v0")
e("v_subrev_u32 v6, 214, v0")
g.nop(1)
e("v_cndmask_b32 v6, v0, v6, vcc")
e("v_cndmask_b32 v7, 0, 1, vcc")
e("v_mul_u32_u24 v5, 15360, v7")
e("v_mul_u32_u24 v8, 12, v6")
e("v_add_u32 v5, v5, v8")
e("v_cmp_gt_u32 vcc, 428, v0")
e("s_and_saveexec_b64 s[78:79], vcc")
e("s_cbranch_execz L_s2_done")
for rg in range(6):
    for k in range(3):
        e(f"ds_read_b32 v{40+4*rg+k}, v5 offset:{S2_OFF + 2560*rg + 4*k}")
e("s_waitcnt lgkmcnt(0)")
for rg in range(1, 6):
    for k in range(3):
        e(f"v_add_f32 v{40+k}, v{40+k}, v{40+4*rg+k}")
e("v_mov_b32 v43, s86")
e("v_mul_u32_u24 v9, 3424, v7")
e("v_lshlrev_b32 v8, 4, v6")
e("v_add_u32 v9, v9, v8")
e("s_lshl_b32 s72, s2, 13")
e(f"s_add_u32 s72, s72, {WS_S}")
e("v_add_u32 v9, s72, v9")
e("global_store_dwordx4 v9, v[40:43], s[28:29] sc1")
g.lab("L_s2_done")
full_exec()
e("s_cmp_ge_u32 s2, 214")
e("s_cbranch_scc1 L_fin")
e("v_lshrrev_b32 v7, 8, v0")
e("v_and_b32 v6, 255, v0")
e("v_lshlrev_b32 v6, 13, v6")
e("v_mul_u32_u24 v9, 3424, v7")
e("v_add_u32 v9, v9, v6")
e("s_lshl_b32 s72, s2, 4")
e(f"s_add_u32 s72, s72, {WS_S}")
e("v_add_u32 v9, s72, v9")
e("s_mul_i32 s72, s2, 3")
e("v_add_u32 v5, s72, v1")
e("v_lshlrev_b32 v5, 1, v5")
e("buffer_load_ushort v44, v5, s[56:59], 0 offen")
e("buffer_load_ushort v45, v5, s[64:67], 0 offen")
SLP = 1
for o in OPTS:
    if o.startswith("slp"):
        SLP = int(o[3:])
e("s_mov_b32 s74, 0")
g.lab("L_fpoll")
e("global_load_dwordx4 v[40:43], v9, s[28:29] sc1")
e("s_waitcnt vmcnt(0)")
e("v_cmp_ne_u32 vcc, v137, v43")
e("v_cmp_eq_u32 s[78:79], 0, v137")
e("s_add_u32 s74, s74, 1")
g.nop(4)
e("s_or_b64 vcc, vcc, s[78:79]")
g.nop(4)
e("s_cbranch_vccz L_fpoll_done")
e("s_cmp_ge_u32 s74, 0x40000")
e("s_cbranch_scc1 L_fpoll_done")
e("s_mov_b64 exec, vcc")
e(f"s_sleep {SLP}")
e("global_load_dword v137, v135, s[26:27] sc1")
e("s_branch L_fpoll")
g.lab("L_fpoll_done")
full_exec()
stamp(9)
dpp_reduce("v_add_f32", [40, 41, 42])
e("s_lshl_b32 s72, s70, 4")
e("v_mov_b32 v6, s72")
set_exec("0", "0x80000000")
e(f"ds_write_b128 v6, v[40:43] offset:{RED_OFF}")
full_exec()
e("s_waitcnt lgkmcnt(0)")
e("s_barrier")
e("s_cmp_lg_u32 s70, 0")
e("s_cbranch_scc1 L_fin")
set_exec("0x7", "0")
e("v_lshlrev_b32 v6, 2, v1")
for w in range(8):
    e(f"ds_read_b32 v{48+w}, v6 offset:{RED_OFF + 16*w}")
e("s_waitcnt lgkmcnt(0)")
e("v_add_f32 v48, v48, v49")
e("v_add_f32 v50, v50, v51")
e("v_add_f32 v48, v48, v50")
e("v_add_f32 v52, v52, v53")
e("v_add_f32 v54, v54, v55")
e("v_add_f32 v52, v52, v54")
rnd(48, 48)
rnd(52, 52)
e("v_lshlrev_b32 v45, 16, v45")
e("v_add_f32 v52, v52, v45")
rnd(52, 52)
e(f"v_mul_f32 v53, {f32(-1.4426950408889634)}, v52")
e("v_exp_f32 v53, v53")
g.nop(1)
e("v_add_f32 v53, 1.0, v53")
e("v_rcp_f32 v53, v53")
g.nop(1)
e("v_mul_f32 v52, v52, v53")
rnd(52, 52)
e("v_mul_f32 v48, v48, v52")
rnd(48, 48)
e("v_lshlrev_b32 v44, 16, v44")
e("v_add_f32 v48, v44, v48")
e("v_cvt_pk_bf16_f32 v48, v48, v48")
e("v_cmp_gt_u32 vcc, 1280, v5")
e("s_and_saveexec_b64 s[78:79], vcc")
e("s_cbranch_execz L_nostore")
e("global_store_short v5, v48, s[24:25]")
g.lab("L_nostore")
full_exec()
g.lab("L_fin")
if STAMPS:
    stamp(10)
    e("s_lshl_b32 s72, s2, 3")
    e("s_add_u32 s72, s72, s70")
    e("s_lshl_b32 s72, s72, 6")
    e(f"s_add_u32 s72, s72, {WS_STAMP}")
    e("v_mov_b32 v5, s72")
    set_exec("1", "0")
    for i in range(11):
        e(f"v_mov_b32 v6, s{88+i}")
        e(f"global_store_dword v5, v6, s[28:29] offset:{4*i}")
        e("s_waitcnt vmcnt(0)")
    full_exec()
    if "dbg" in OPTS:
        e("s_cmp_lg_u32 s70, 5")
        e("s_cbranch_scc1 L_end")
        e("s_cmp_eq_u32 s2, 0")
        e("s_cselect_b32 s72, 4, 28")
        e("s_cmp_eq_u32 s2, 0")
        e("s_cbranch_scc1 L_dbg")
        e("s_cmp_lg_u32 s2, 9")
        e("s_cbranch_scc1 L_end")
        g.lab("L_dbg")
        e("v_mov_b32 v5, s72")
        set_exec("1", "0")
        for k, i in enumerate((3, 7, 10)):
            e(f"s_sub_u32 s74, s{88+i}, s88")
            e("v_mov_b32 v6, s74")
            e(f"global_store_dword v5, v6, s[26:27] offset:{8*k}")
            e("s_waitcnt vmcnt(0)")
        full_exec()
g.lab("L_end")
e("s_endpgm")

hdr = open(f"cdna_kernels/{NAME}.s.ref").read().split("; Override launch")[0]
txt = hdr + f"""; Override launch geometry by editing the next line (default: block=256,
; grid=ceil(out_elems/256), lds=0). Harness parses it; keep it on one line.
; @launch grid=(256,1,1) block=(512,1,1) lds={LDS_BYTES}
.amdgcn_target "amdgcn-amd-amdhsa--gfx950"
.text
.globl {NAME}_kernel
.p2align 8
.type {NAME}_kernel,@function
{NAME}_kernel:
""" + "\n".join(g.L) + f"""
.section .rodata,"a"
.p2align 6
.amdhsa_kernel {NAME}_kernel
  .amdhsa_next_free_vgpr 256
  .amdhsa_next_free_sgpr 102
  .amdhsa_accum_offset 256
  .amdhsa_group_segment_fixed_size 0
  .amdhsa_kernarg_size 104
  .amdhsa_user_sgpr_count 2
  .amdhsa_user_sgpr_kernarg_segment_ptr 1
  .amdhsa_system_sgpr_workgroup_id_x 1
.end_amdhsa_kernel
"""
open(OUT, "w").write(txt)
print("wrote", OUT, len(g.L), "lines")
```

```python
import struct, sys, math

NAME = "recurrent_scan__gqa_block_cached__mixer_channel_mlp__decode"
OUT = sys.argv[1] if len(sys.argv) > 1 else f"cdna_kernels/{NAME}.s"
OPTS = set(sys.argv[2:])
NT = "nont" not in OPTS
STAMPS = "stamps" in OPTS

def f32(x):
    return "0x%08x" % struct.unpack("<I", struct.pack("<f", x))[0]

LOG2E = f32(1.4426950408889634)
SCALE = f32(192 ** -0.5)
INV640 = f32(1.0 / 640.0)
EPS = f32(1e-5)

XN_OFF = 0
Y_OFF = 2560
QPART_OFF = 5120
HPART_OFF = 17408
QBF_OFF = 17664
H_OFF = 18048
ML_OFF = 18080
OFIN_OFF = 18144
RED_OFF = 18240
NONCE_OFF = 18400
OSUM_OFF = 18432
OG_OFF = 19456
S2_OFF = 20480
LBUF_OFF = 20480
NLDS = 0
for o in OPTS:
    if o.startswith("lds"):
        NLDS = int(o[3:])
LDS_BYTES = max(S2_OFF + 2 * 6 * 2560 + 64, LBUF_OFF + 8 * NLDS * 1024)
WS_Q = 0
WS_O = 0x40000
WS_S = 0x100000
WS_STAMP = 0x400000

class G:
    def __init__(s):
        s.L = []
        s.vm = []
    def e(s, t):
        s.L.append("    " + t)
    def lab(s, t):
        s.L.append(t + ":")
    def vmem(s, t, tag):
        s.e(t)
        s.vm.append(tag)
    def wait_tag(s, tag):
        idx = max(i for i, t in enumerate(s.vm) if t == tag)
        n = min(len(s.vm) - 1 - idx, 63)
        s.e(f"s_waitcnt vmcnt({n})")
    def nop(s, n):
        while n > 0:
            k = min(n, 16)
            s.e(f"s_nop {k-1}")
            n -= k

g = G()
e = g.e

def rnd(dst, src):
    e(f"v_cvt_pk_bf16_f32 v{dst}, v{src}, v{src}")
    e(f"v_and_b32 v{dst}, 0xffff0000, v{dst}")

def dpp_reduce(op, regs):
    steps = ["row_shr:1 row_mask:0xf bank_mask:0xf", "row_shr:2 row_mask:0xf bank_mask:0xf",
             "row_shr:4 row_mask:0xf bank_mask:0xf", "row_shr:8 row_mask:0xf bank_mask:0xf",
             "row_bcast:15 row_mask:0xa bank_mask:0xf", "row_bcast:31 row_mask:0xc bank_mask:0xf"]
    for st in steps:
        if len(regs) < 3:
            g.nop(2)
        for r in regs:
            e(f"{op}_dpp v{r}, v{r}, v{r} {st}")

def reduce_to_sgpr(op, r, sd):
    dpp_reduce(op, [r])
    g.nop(1)
    e(f"v_readlane_b32 s{sd}, v{r}, 63")
    g.nop(2)

def set_exec(lo, hi):
    e(f"s_mov_b32 exec_lo, {lo}")
    e(f"s_mov_b32 exec_hi, {hi}")

def full_exec():
    e("s_mov_b64 exec, -1")

ntf = " nt" if NT else ""
EARLY = "early" in OPTS
def stamp(i, early=False):
    if EARLY and i in (4, 5, 6) and not early:
        return
    if early and not EARLY:
        return
    if STAMPS:
        e("s_memrealtime s[100:101]")
        e("s_waitcnt lgkmcnt(0)")
        e(f"s_mov_b32 s{88+i}, s100")

_poll_id = [0]
def poll_granule(vdst, vaddr, ws_off, tag_src):
    n = _poll_id[0]; _poll_id[0] += 1
    e("s_mov_b32 s74, 0")
    g.lab(f"L_poll{n}")
    e(f"global_load_dwordx4 v[{vdst}:{vdst+3}], v{vaddr}, s[28:29] offset:{ws_off} sc1")
    e("s_waitcnt vmcnt(0)")
    e(f"v_cmp_ne_u32 vcc, {tag_src}, v{vdst+3}")
    e("s_add_u32 s74, s74, 1")
    g.nop(4)
    e(f"s_cbranch_vccz L_poll{n}_done")
    e("s_cmp_ge_u32 s74, 0x40000")
    e(f"s_cbranch_scc1 L_poll{n}_done")
    if "nosleep" not in OPTS:
        e("s_sleep 1")
    e(f"s_branch L_poll{n}")
    g.lab(f"L_poll{n}_done")

e("s_cmp_ge_u32 s2, 256")
e("s_cbranch_scc1 L_end")
stamp(0)
e("s_load_dwordx16 s[4:19], s[0:1], 0")
e("s_load_dwordx8 s[20:27], s[0:1], 64")
e("s_load_dwordx2 s[28:29], s[0:1], 96")
e("s_memrealtime s[86:87]")
e("v_and_b32 v1, 63, v0")
e("v_lshrrev_b32 v5, 6, v0")
g.nop(1)
e("v_readfirstlane_b32 s70, v5")
LINMAP = "linmap" in OPTS
if LINMAP:
    e("s_lshr_b32 s68, s2, 3")
    e("s_and_b32 s69, s2, 7")
else:
    e("s_and_b32 s68, s2, 7")
    e("s_lshl_b32 s68, s68, 2")
    e("s_lshr_b32 s69, s2, 3")
    e("s_and_b32 s69, s69, 3")
    e("s_add_u32 s68, s68, s69")
    e("s_lshr_b32 s69, s2, 5")
e("s_and_b32 s30, s2, 7")
e("s_lshl_b32 s30, s30, 5")
e("s_lshr_b32 s31, s2, 3")
e("s_add_u32 s30, s30, s31")
e("v_and_b32 v6, 7, v1")
e("v_mul_u32_u24 v2, 384, v6")
e("v_lshrrev_b32 v6, 3, v1")
e("v_lshlrev_b32 v6, 4, v6")
e("v_add_u32 v2, v2, v6")
e("v_lshrrev_b32 v7, 5, v1")
e("v_and_b32 v8, 31, v1")
e("v_mul_u32_u24 v3, 384, v7")
e("v_mul_u32_u24 v6, 12, v8")
e("v_add_u32 v3, v3, v6")
e("s_waitcnt lgkmcnt(0)")
def srd(base, ptr, nbytes):
    e(f"s_mov_b32 s{base}, s{ptr}")
    e(f"s_and_b32 s{base+1}, s{ptr+1}, 0xffff")
    e(f"s_mov_b32 s{base+2}, {nbytes}")
    e(f"s_mov_b32 s{base+3}, 0x00020000")
srd(56, 4, 1280)
srd(32, 6, 100663296)
srd(36, 8, 100663296)
srd(40, 10, 7864320)
srd(44, 12, 7864320)
srd(48, 16, 1966080)
srd(60, 18, 3072)
srd(52, 20, 1966080)
srd(64, 22, 1280)
for b in range(8):
    e(f"s_mov_b32 s{4+2*b}, {hex((0xff << (8*b)) & 0xffffffff) if b < 4 else 0}")
    e(f"s_mov_b32 s{5+2*b}, {hex((0xff << (8*(b-4))) & 0xffffffff) if b >= 4 else 0}")
e("s_mov_b32 s20, 0xff00ff00")
e("s_mov_b32 s21, 0xff00ff00")
e("s_mul_i32 s73, s68, 3145728")
e("s_mul_i32 s74, s69, 393216")
e("s_add_u32 s73, s73, s74")
e("s_mul_i32 s74, s70, 49152")
e("s_add_u32 s73, s73, s74")
e("s_or_b32 s86, s86, 1")
e("v_lshrrev_b32 v6, 5, v1")
e("s_lshl_b32 s72, s70, 1")
e("v_add_u32 v6, s72, v6")
e("v_mul_u32_u24 v6, 768, v6")
e("v_mul_u32_u24 v9, 24, v8")
e("v_add_u32 v13, v6, v9")
NSLOT = 48
STREAM = []
for t_ in range(2):
    STREAM += [("K", t_, i) for i in range(24)]
    STREAM += [("V", t_, i) for i in range(32)]
POS = {x: n for n, x in enumerate(STREAM)}
def slot_reg(kind, tile, idx):
    return 64 + 4 * (POS[(kind, tile, idx)] % NSLOT)
issued = [0]
lds_pending = [False]
def lds_prefetch():
    if NLDS == 0:
        return
    e(f"s_mul_i32 s74, s70, {NLDS*1024}")
    e(f"s_add_u32 s74, s74, {LBUF_OFF}")
    for i in range(NLDS):
        b, j = divmod(i, 3)
        e(f"s_add_u32 s72, s73, {24576 + b*3072 + 128*j}")
        e(f"s_add_u32 m0, s74, {1024*i}")
        if pacing[0] and PACE:
            e(f"s_waitcnt vmcnt({PACE-1})")
        else:
            e("s_nop 0")
        g.vmem(f"buffer_load_dwordx4 v2, s[32:35], s72 offen{ntf} lds", "KL")
PACE = 0
for o in OPTS:
    if o.startswith("pace"):
        PACE = int(o[4:])
pacing = [False]
def issue(n):
    for _ in range(n):
        if issued[0] >= len(STREAM):
            return
        if pacing[0] and PACE and len(g.vm) >= PACE:
            e(f"s_waitcnt vmcnt({PACE-1})")
        kind, tile, i = STREAM[issued[0]]
        r = 64 + 4 * (issued[0] % NSLOT)
        issued[0] += 1
        if kind == "K" and tile == 1 and i < NLDS:
            if i == 0:
                g.wait_tag("KL")
            e(f"ds_read_b128 v[{r}:{r+3}], v4 offset:{1024*i}")
            lds_pending[0] = True
        elif kind == "K":
            b, j = divmod(i, 3)
            e(f"s_add_u32 s72, s73, {tile*24576 + b*3072}")
            g.vmem(f"buffer_load_dwordx4 v[{r}:{r+3}], v2, s[32:35], s72 offen offset:{128*j}{ntf}", f"K{tile}_{i}")
        else:
            e(f"s_add_u32 s72, s73, {tile*24576 + i*768}")
            g.vmem(f"buffer_load_dwordx3 v[{r}:{r+2}], v3, s[36:39], s72 offen{ntf}", f"V{tile}_{i}")
def x_loads():
    e("v_lshlrev_b32 v5, 2, v1")
    for r in range(5):
        g.vmem(f"buffer_load_dword v{47+r}, v5, s[56:59], 0 offen offset:{256*r}", "x")
def x_unpack():
    for r in range(5):
        e(f"v_lshlrev_b32 v{52+2*r}, 16, v{47+r}")
        e(f"v_and_b32 v{53+2*r}, 0xffff0000, v{47+r}")
def layernorm(lds_off):
    e("v_add_f32 v43, v52, v53")
    for k in range(54, 62):
        e(f"v_add_f32 v43, v43, v{k}")
    reduce_to_sgpr("v_add_f32", 43, 74)
    e(f"v_mov_b32 v62, {INV640}")
    e("v_mul_f32 v62, s74, v62")
    e("v_sub_f32 v63, v52, v62")
    e("v_mul_f32 v43, v63, v63")
    for k in range(53, 62):
        e(f"v_sub_f32 v63, v{k}, v62")
        e("v_fma_f32 v43, v63, v63, v43")
    reduce_to_sgpr("v_add_f32", 43, 74)
    e(f"v_mov_b32 v63, {INV640}")
    e("v_mul_f32 v63, s74, v63")
    rnd(62, 62)
    rnd(63, 63)
    e(f"v_add_f32 v63, {EPS}, v63")
    rnd(63, 63)
    e("v_sqrt_f32 v63, v63")
    g.nop(1)
    rnd(63, 63)
    e("v_rcp_f32 v63, v63")
    g.nop(1)
    for k in range(52, 62):
        e(f"v_sub_f32 v{k}, v{k}, v62")
        rnd(k, k)
        e(f"v_mul_f32 v{k}, v{k}, v63")
        rnd(k, k)
    if lds_off is not None:
        e("v_lshlrev_b32 v5, 3, v1")
        for r in range(5):
            e(f"ds_write_b64 v5, v[{52+2*r}:{53+2*r}] offset:{lds_off + 512*r}")

if "streamonly" not in OPTS:
    e("s_cmp_eq_u32 s70, 0")
    e("s_cbranch_scc1 L_wave_q")
    e("s_cmp_eq_u32 s70, 1")
    e("s_cbranch_scc1 L_wave_h")
g.vm = []
e("s_barrier")
issued[0] = 0
INIT = NSLOT
for o in OPTS:
    if o.startswith("init"):
        INIT = int(o[4:])
pacing[0] = True
issue(INIT)
lds_prefetch()
pacing[0] = False
if "nobar" not in OPTS:
    e("s_barrier")
issue(NSLOT - INIT)
common_vm = list(g.vm)
e("s_branch L_join")

g.lab("L_wave_q")
if "noprio" not in OPTS:
    e("s_setprio 3")
g.vm = []
x_loads()
e("s_mul_i32 s71, s69, 80")
e("v_add_u32 v4, s71, v7")
e("v_mov_b32 v9, 12288")
e("v_mul_lo_u32 v4, v4, v9")
e("v_mul_u32_u24 v6, 12, v8")
e("v_add_u32 v4, v4, v6")
e("s_mul_i32 s72, s68, 384")
e("v_add_u32 v4, s72, v4")
e("s_mov_b32 s72, 0")
for i in range(40):
    r = 64 + 4 * i
    g.vmem(f"buffer_load_dwordx3 v[{r}:{r+2}], v4, s[40:43], s72 offen", f"wq{i//10}")
    if i != 39:
        e("s_add_u32 s72, s72, 24576")
e("s_lshl_b32 s72, s68, 3")
e("v_mov_b32 v9, s72")
e("v_mov_b32 v10, s86")
e("v_mov_b32 v11, 0")
set_exec("1", "0")
g.vmem("global_atomic_cmpswap v12, v9, v[10:11], s[26:27] sc0 sc1", "nonce")
full_exec()
e("s_barrier")
stamp(5, True)
g.wait_tag("x")
stamp(6, True)
x_unpack()
layernorm(XN_OFF)
e("s_waitcnt lgkmcnt(0)")
stamp(1)
for k in range(56, 62):
    e(f"v_mov_b32 v{k}, 0")
e("v_lshrrev_b32 v5, 5, v1")
e("v_add_u32 v5, s71, v5")
e("v_lshlrev_b32 v5, 2, v5")
for i in range(40):
    e(f"ds_read_b32 v{64+4*i+3}, v5 offset:{XN_OFF + 8*i}")
e("s_waitcnt lgkmcnt(0)")
for i in range(40):
    if i % 10 == 0:
        g.wait_tag(f"wq{i//10}")
    r = 64 + 4 * i
    e(f"v_lshrrev_b32 v14, 16, v{r+3}")
    for d in range(3):
        e(f"v_dot2_f32_bf16 v{56+2*d}, v{r+d}, v14, v{56+2*d}")
        e(f"v_dot2_f32_bf16 v{57+2*d}, v{r+d}, v{r+3}, v{57+2*d}")
g.nop(3)
e(f"ds_write_b64 v13, v[56:57] offset:{QPART_OFF}")
e(f"ds_write_b64 v13, v[58:59] offset:{QPART_OFF+8}")
e(f"ds_write_b64 v13, v[60:61] offset:{QPART_OFF+16}")
e("v_mul_u32_u24 v5, 12, v1")
e("s_waitcnt lgkmcnt(0)")
for d in range(3):
    e(f"ds_read_b32 v{16+d}, v5 offset:{QPART_OFF + 4*d}")
    e(f"ds_read_b32 v{20+d}, v5 offset:{QPART_OFF + 768 + 4*d}")
g.wait_tag("nonce")
e("v_readfirstlane_b32 s87, v12")
g.nop(3)
e("s_cmp_eq_u32 s87, 0")
e("s_cselect_b32 s86, s86, s87")
e("s_waitcnt lgkmcnt(0)")
for d in range(3):
    e(f"v_add_f32 v{16+d}, v{16+d}, v{20+d}")
e("v_mov_b32 v19, s86")
e("s_lshl_b32 s72, s68, 3")
e("s_add_u32 s72, s72, s69")
e("s_lshl_b32 s72, s72, 10")
e("v_lshlrev_b32 v9, 4, v1")
e("v_add_u32 v5, s72, v9")
e(f"global_store_dwordx4 v5, v[16:19], s[28:29] offset:{WS_Q} sc1")
e("v_mov_b32 v5, 0")
e("v_mov_b32 v6, s86")
e(f"ds_write_b32 v5, v6 offset:{NONCE_OFF}")
stamp(2)
e("s_lshl_b32 s72, s68, 13")
e("v_add_u32 v9, s72, v9")
if "ppoll" in OPTS:
    e("v_add_u32 v10, 4096, v9")
    def rnd_issue(base):
        for cc in range(8):
            a_ = "v9" if cc < 4 else "v10"
            e(f"global_load_dwordx4 v[{base+4*cc}:{base+3+4*cc}], {a_}, s[28:29] offset:{WS_Q + 1024*(cc%4)} sc1")
    SETS = (64, 96, 128)
    PS = 8
    for o in OPTS:
        if o.startswith("ps"):
            PS = int(o[2:])
    e("s_waitcnt vmcnt(0)")
    rnd_issue(SETS[0]); e(f"s_sleep {PS}")
    rnd_issue(SETS[1]); e(f"s_sleep {PS}")
    rnd_issue(SETS[2])
    e("s_mov_b32 s74, 0")
    g.lab("L_qg")
    for k, base in enumerate(SETS):
        e("s_waitcnt vmcnt(16)")
        e(f"v_cmp_ne_u32 vcc, s86, v{base+3}")
        for cc in range(1, 8):
            e(f"v_cmp_ne_u32 s[78:79], s86, v{base+3+4*cc}")
            g.nop(1)
            e("s_or_b64 vcc, vcc, s[78:79]")
        e("s_add_u32 s74, s74, 1")
        g.nop(4)
        e(f"s_cbranch_vccz L_qg_ok{k}")
        e("s_cmp_ge_u32 s74, 0x40000")
        e(f"s_cbranch_scc1 L_qg_ok{k}")
        rnd_issue(base)
    e("s_branch L_qg")
    for k, base in enumerate(SETS):
        g.lab(f"L_qg_ok{k}")
        for d in range(3):
            for st in (4, 2, 1):
                for kk in range(st):
                    e(f"v_add_f32 v{base+4*kk+d}, v{base+4*kk+d}, v{base+4*(kk+st)+d}")
        for d in range(3):
            e(f"v_mov_b32 v{160+d}, v{base+d}")
        e("s_branch L_qg_done")
    g.lab("L_qg_done")
    for d in range(3):
        e(f"v_mov_b32 v{164+d}, v{160+d}")
else:
    e("s_mov_b32 s74, 0")
    g.lab("L_qg")
    for cc in range(8):
        if cc == 4:
            e("v_add_u32 v10, 4096, v9")
        a_ = "v9" if cc < 4 else "v10"
        e(f"global_load_dwordx4 v[{64+4*cc}:{67+4*cc}], {a_}, s[28:29] offset:{WS_Q + 1024*(cc%4)} sc1")
    e("s_waitcnt vmcnt(0)")
    e("v_cmp_ne_u32 vcc, s86, v67")
    for cc in range(1, 8):
        e(f"v_cmp_ne_u32 s[78:79], s86, v{67+4*cc}")
        g.nop(1)
        e("s_or_b64 vcc, vcc, s[78:79]")
    e("s_add_u32 s74, s74, 1")
    g.nop(4)
    e("s_cbranch_vccz L_qg_done")
    e("s_cmp_ge_u32 s74, 0x40000")
    e("s_cbranch_scc1 L_qg_done")
    e("s_branch L_qg")
    g.lab("L_qg_done")
    for d in range(3):
        for st in (4, 2, 1):
            for k in range(st):
                e(f"v_add_f32 v{64+4*k+d}, v{64+4*k+d}, v{64+4*(k+st)+d}")

QR = 164 if "ppoll" in OPTS else 64
e(f"v_cvt_pk_bf16_f32 v{QR}, v{QR}, v{QR}")
e(f"v_cvt_pk_bf16_f32 v{QR+1}, v{QR+1}, v{QR+1}")
e(f"v_cvt_pk_bf16_f32 v{QR+2}, v{QR+2}, v{QR+2}")
e("v_mul_u32_u24 v5, 6, v1")
e(f"ds_write_b16 v5, v{QR} offset:{QBF_OFF}")
e(f"ds_write_b16 v5, v{QR+1} offset:{QBF_OFF+2}")
e(f"ds_write_b16 v5, v{QR+2} offset:{QBF_OFF+4}")
e("s_waitcnt lgkmcnt(0)")
e("s_branch L_late_stream")

g.lab("L_wave_h")
g.vm = []
x_loads()
e("v_mul_u32_u24 v6, 3072, v1")
e("s_mul_i32 s72, s30, 12")
e("v_add_u32 v6, s72, v6")
e("s_mov_b32 s72, 0")
for r in range(10):
    g.vmem(f"buffer_load_dwordx3 v[{64+4*r}:{66+4*r}], v6, s[48:51], s72 offen", "w1")
    if r != 9:
        e(f"s_add_u32 s72, s72, {64*3072}")
e("s_mul_i32 s72, s30, 6")
e("v_add_u32 v6, s72, v1")
e("v_lshlrev_b32 v6, 1, v6")
g.vmem("buffer_load_ushort v15, v6, s[60:63], 0 offen", "b1")
e("s_barrier")
g.wait_tag("x")
x_unpack()
layernorm(None)
layernorm(Y_OFF)
e("s_waitcnt lgkmcnt(0)")
e("v_lshlrev_b32 v5, 2, v1")
for r in range(10):
    e(f"ds_read_b32 v{64+4*r+3}, v5 offset:{Y_OFF + 256*r}")
for k in range(16, 22):
    e(f"v_mov_b32 v{k}, 0")
g.wait_tag("b1")
e("s_waitcnt lgkmcnt(0)")
for r in range(10):
    rr = 64 + 4 * r
    e(f"v_lshrrev_b32 v14, 16, v{rr+3}")
    for d in range(3):
        e(f"v_dot2_f32_bf16 v{16+2*d}, v{rr+d}, v14, v{16+2*d}")
        e(f"v_dot2_f32_bf16 v{17+2*d}, v{rr+d}, v{rr+3}, v{17+2*d}")
g.nop(4)
dpp_reduce("v_add_f32", list(range(16, 22)))
e("v_mov_b32 v5, 0")
set_exec("0", "0x80000000")
e(f"ds_write_b64 v5, v[16:17] offset:{HPART_OFF}")
e(f"ds_write_b64 v5, v[18:19] offset:{HPART_OFF+8}")
e(f"ds_write_b64 v5, v[20:21] offset:{HPART_OFF+16}")
set_exec("0x3f", "0")
e("v_lshlrev_b32 v5, 2, v1")
e("s_waitcnt lgkmcnt(0)")
e(f"ds_read_b32 v40, v5 offset:{HPART_OFF}")
e("s_waitcnt lgkmcnt(0)")
rnd(40, 40)
e("v_lshlrev_b32 v41, 16, v15")
e("v_add_f32 v40, v40, v41")
rnd(40, 40)
e("v_mul_f32 v41, v40, v40")
e(f"v_mov_b32 v42, {f32(0.044715)}")
e("v_fma_f32 v41, v41, v42, 1.0")
e("v_mul_f32 v41, v41, v40")
e(f"v_mul_f32 v41, {f32(2.0 * math.sqrt(2.0 / math.pi) * 1.4426950408889634)}, v41")
e("v_exp_f32 v41, v41")
g.nop(1)
e("v_add_f32 v41, 1.0, v41")
e("v_rcp_f32 v41, v41")
g.nop(1)
e("v_fma_f32 v40, -v40, v41, v40")
rnd(40, 40)
e(f"ds_write_b32 v5, v40 offset:{H_OFF}")
full_exec()
e("s_waitcnt vmcnt(0) lgkmcnt(0)")
g.vm = []
issued[0] = 0
pacing[0] = True
issue(INIT)
lds_prefetch()
pacing[0] = False
e("s_barrier")
issue(NSLOT - INIT)
assert g.vm == common_vm
e("s_branch L_join")
g.lab("L_late_stream")
e("s_barrier")
e("s_setprio 0")
e("s_waitcnt vmcnt(0)")
g.vm = []
issued[0] = 0
issue(INIT)
lds_prefetch()
issue(NSLOT - INIT)
assert g.vm == common_vm
g.lab("L_join")
stamp(3)
e("v_mov_b32 v5, 0")
e(f"ds_read_b32 v6, v5 offset:{NONCE_OFF}")
e("v_lshrrev_b32 v5, 4, v1")
e("v_lshlrev_b32 v5, 1, v5")
e("v_and_b32 v7, 1, v1")
e("v_add_u32 v5, v5, v7")
e("v_lshlrev_b32 v5, 4, v5")
for j in range(3):
    e(f"ds_read_b128 v[{16+4*j}:{19+4*j}], v5 offset:{QBF_OFF + 128*j}")
e("v_lshrrev_b32 v5, 5, v1")
e("v_lshlrev_b32 v5, 2, v5")
for k in range(56, 62):
    e(f"v_mov_b32 v{k}, 0")
e("s_waitcnt lgkmcnt(0)")
e("v_readfirstlane_b32 s86, v6")
g.nop(3)
if NLDS:
    e(f"s_mul_i32 s74, s70, {NLDS*1024}")
    e(f"s_add_u32 s74, s74, {LBUF_OFF}")
    e("v_lshlrev_b32 v4, 4, v1")
    e("v_add_u32 v4, s74, v4")

def qk(tile):
    for half in range(2):
        for bb in range(4):
            b = 4 * half + bb
            if tile == 1 and 3 * b + 2 < NLDS:
                if lds_pending[0]:
                    e("s_waitcnt lgkmcnt(0)")
                    lds_pending[0] = False
            else:
                if tile == 1 and lds_pending[0]:
                    e("s_waitcnt lgkmcnt(0)")
                    lds_pending[0] = False
                g.wait_tag(f"K{tile}_{3*b+2}")
            for j in range(3):
                r = slot_reg("K", tile, 3 * b + j)
                c = "0" if j == 0 else f"v[{40+4*bb}:{43+4*bb}]"
                e(f"v_mfma_f32_16x16x32_bf16 v[{40+4*bb}:{43+4*bb}], v[{16+4*j}:{19+4*j}], v[{r}:{r+3}], {c}")
            issue(3)
        g.nop(10)
        for bb in range(4):
            e(f"v_cndmask_b32 v{40+4*bb}, v{40+4*bb}, v{41+4*bb}, s[20:21]")
        g.nop(1)
        for bb in range(4):
            e(f"v_add_f32_dpp v{41+4*bb}, v{40+4*bb}, v{40+4*bb} row_ror:8 row_mask:0xf bank_mask:0xf")
        for bb in range(4):
            b = 4 * half + bb
            if b == 0:
                e("v_mov_b32 v62, v41")
            else:
                e(f"v_cndmask_b32 v62, v62, v{41+4*bb}, s[{4+2*b}:{5+2*b}]")
    rnd(62, 62)
    e(f"v_mul_f32 v62, {SCALE}, v62")
    rnd(62, 62)
    e("v_mov_b32 v63, v62")
    reduce_to_sgpr("v_max_f32", 63, 76)
def softmax(tile):
    if tile == 0:
        e("s_mov_b32 s77, s76")
        e("v_subrev_f32 v62, s77, v62")
        e(f"v_mul_f32 v62, {LOG2E}, v62")
        e("v_exp_f32 v62, v62")
        g.nop(1)
        e("v_mov_b32 v12, v62")
    else:
        e("v_mov_b32 v6, s76")
        e("v_max_f32 v6, s77, v6")
        g.nop(1)
        e("v_readfirstlane_b32 s78, v6")
        e("v_sub_f32 v6, s77, v6")
        e(f"v_mul_f32 v6, {LOG2E}, v6")
        e("v_exp_f32 v6, v6")
        e("s_mov_b32 s77, s78")
        g.nop(2)
        e("v_subrev_f32 v62, s77, v62")
        e(f"v_mul_f32 v62, {LOG2E}, v62")
        e("v_exp_f32 v62, v62")
        for k in range(56, 62):
            e(f"v_mul_f32 v{k}, v{k}, v6")
        e("v_fma_f32 v12, v12, v6, v62")
    rnd(62, 62)
def pv(tile):
    for i in range(32):
        if "nocomp" in OPTS:
            break
        e(f"ds_bpermute_b32 v{slot_reg('V', tile, i)+3}, v5, v62 offset:{8*i}")
        if i % 8 == 7:
            e("s_waitcnt lgkmcnt(0)")
    for i in range(32):
        r = slot_reg("V", tile, i)
        if i % 2 == 0:
            g.wait_tag(f"V{tile}_{i+1}")
        if "nocomp" not in OPTS:
            e(f"v_lshrrev_b32 v14, 16, v{r+3}")
            for d in range(3):
                e(f"v_dot2_f32_bf16 v{56+2*d}, v{r+d}, v14, v{56+2*d}")
                e(f"v_dot2_f32_bf16 v{57+2*d}, v{r+d}, v{r+3}, v{57+2*d}")
        if i % 2 == 1:
            issue(2)

qk(0)
stamp(4)
softmax(0)
pv(0)
stamp(5)
qk(1)
stamp(6)
e("v_mov_b32 v7, 52429")
e("v_mul_u32_u24 v7, v0, v7")
e("v_lshrrev_b32 v7, 22, v7")
e("v_mul_u32_u24 v8, 80, v7")
e("v_sub_u32 v8, v0, v8")
e("v_lshlrev_b32 v9, 2, v7")
e("s_mul_i32 s72, s68, 192")
e("s_mul_i32 s74, s69, 24")
e("s_add_u32 s72, s72, s74")
e("v_add_u32 v9, s72, v9")
e("v_mul_u32_u24 v9, 1280, v9")
e("v_lshlrev_b32 v10, 4, v8")
e("v_add_u32 v9, v9, v10")
for i in range(4):
    g.vmem(f"buffer_load_dwordx4 v[{144+4*i}:{147+4*i}], v9, s[44:47], 0 offen offset:{1280*i}", "wo")
e("s_mul_i32 s72, s30, 6")
e("v_add_u32 v9, s72, v7")
e("v_mul_u32_u24 v9, 1280, v9")
e("v_add_u32 v9, v9, v10")
g.vmem("buffer_load_dwordx4 v[140:143], v9, s[52:55], 0 offen", "w2")
e("v_mov_b32 v138, v7")
e("v_mov_b32 v139, v8")
if LINMAP:
    e("v_lshrrev_b32 v9, 3, v0")
    e("v_and_b32 v9, 31, v9")
else:
    e("v_and_b32 v9, 7, v0")
    e("v_lshlrev_b32 v9, 2, v9")
    e("v_lshrrev_b32 v10, 3, v0")
    e("v_and_b32 v10, 3, v10")
    e("v_add_u32 v9, v9, v10")
e("v_lshlrev_b32 v9, 3, v9")
e("v_mov_b32 v135, v9")
g.vmem("global_load_dword v137, v9, s[26:27] sc1", "nonces")
softmax(1)
pv(1)
stamp(7)
if "streamonly" in OPTS:
    e("s_branch L_fin")

reduce_to_sgpr("v_add_f32", 12, 79)
e(f"ds_write_b64 v13, v[56:57] offset:{QPART_OFF}")
e(f"ds_write_b64 v13, v[58:59] offset:{QPART_OFF+8}")
e(f"ds_write_b64 v13, v[60:61] offset:{QPART_OFF+16}")
e("v_mov_b32 v6, s77")
e("v_mov_b32 v7, s79")
e("s_lshl_b32 s72, s70, 3")
e("v_mov_b32 v5, s72")
set_exec("1", "0")
e(f"ds_write_b64 v5, v[6:7] offset:{ML_OFF}")
full_exec()
e("s_waitcnt lgkmcnt(0)")
e("s_barrier")
e("s_cmp_ge_u32 s70, 3")
e("s_cbranch_scc1 L_comb_done")
e("v_mov_b32 v5, 0")
for w in range(8):
    e(f"ds_read_b64 v[{40+2*w}:{41+2*w}], v5 offset:{ML_OFF + 8*w}")
e("v_lshlrev_b32 v5, 2, v0")
for k in range(16):
    e(f"ds_read_b32 v{64+k}, v5 offset:{QPART_OFF + 768*k}")
e("s_waitcnt lgkmcnt(0)")
e("v_max_f32 v6, v40, v42")
for w in range(2, 8):
    e(f"v_max_f32 v6, v6, v{40+2*w}")
for w in range(8):
    e(f"v_sub_f32 v{40+2*w}, v{40+2*w}, v6")
    e(f"v_mul_f32 v{40+2*w}, {LOG2E}, v{40+2*w}")
    e(f"v_exp_f32 v{40+2*w}, v{40+2*w}")
g.nop(1)
e("v_mul_f32 v7, v40, v41")
for w in range(1, 8):
    e(f"v_fma_f32 v7, v{40+2*w}, v{41+2*w}, v7")
for w in range(8):
    e(f"v_add_f32 v{64+2*w}, v{64+2*w}, v{65+2*w}")
e("v_mul_f32 v8, v40, v64")
for w in range(1, 8):
    e(f"v_fma_f32 v8, v{40+2*w}, v{64+2*w}, v8")
e(f"ds_write_b32 v5, v8 offset:{OSUM_OFF}")
e("s_cmp_lg_u32 s70, 0")
e("s_cbranch_scc1 L_comb_done")
set_exec("1", "0")
e(f"ds_write_b64 v5, v[6:7] offset:{OSUM_OFF+768}")
full_exec()
g.lab("L_comb_done")
e("s_waitcnt lgkmcnt(0)")
e("s_barrier")
e("s_lshl_b32 s72, s68, 3")
e("s_add_u32 s72, s72, s69")
e("s_lshl_b32 s72, s72, 11")
e(f"s_add_u32 s72, s72, {WS_O}")
e("s_cmp_gt_u32 s70, 1")
e("s_cbranch_scc1 L_opub_done")
e("v_mul_u32_u24 v5, 12, v0")
e(f"ds_read_b32 v40, v5 offset:{OSUM_OFF}")
e(f"ds_read_b32 v41, v5 offset:{OSUM_OFF+4}")
e(f"ds_read_b32 v42, v5 offset:{OSUM_OFF+8}")
e("v_mov_b32 v43, s86")
e("v_lshlrev_b32 v6, 4, v0")
e("v_add_u32 v6, s72, v6")
e("s_cmp_eq_u32 s70, 0")
e("s_cbranch_scc1 L_opub_st")
set_exec("1", "0")
g.lab("L_opub_st")
e("s_waitcnt lgkmcnt(0)")
e("global_store_dwordx4 v6, v[40:43], s[28:29] sc1")
full_exec()
g.lab("L_opub_done")
e("s_cmp_gt_u32 s70, 1")
e("s_cbranch_scc1 L_og_done")
e("s_lshl_b32 s72, s68, 14")
e(f"s_add_u32 s72, s72, {WS_O}")
e("s_cmp_eq_u32 s70, 1")
e("s_cbranch_scc1 L_og_ml")
e("v_lshrrev_b32 v6, 3, v1")
e("v_lshlrev_b32 v9, 11, v6")
e("v_and_b32 v7, 7, v1")
e("s_lshl_b32 s74, s69, 3")
e("v_add_u32 v8, s74, v7")
e("v_lshlrev_b32 v8, 4, v8")
e("v_add_u32 v9, v9, v8")
e("v_add_u32 v9, s72, v9")
poll_granule(40, 9, 0, "s86")
e("v_mul_u32_u24 v5, 96, v6")
e("v_mul_u32_u24 v7, 12, v7")
e("v_add_u32 v5, v5, v7")
e(f"ds_write_b32 v5, v40 offset:{OG_OFF}")
e(f"ds_write_b32 v5, v41 offset:{OG_OFF+4}")
e(f"ds_write_b32 v5, v42 offset:{OG_OFF+8}")
e("s_branch L_og_done")
g.lab("L_og_ml")
set_exec("0xff", "0")
e("v_lshlrev_b32 v9, 11, v1")
e("v_add_u32 v9, s72, v9")
poll_granule(40, 9, 1024, "s86")
e("v_lshlrev_b32 v5, 3, v1")
e(f"ds_write_b64 v5, v[40:41] offset:{OG_OFF+768}")
full_exec()
g.lab("L_og_done")
e("s_waitcnt lgkmcnt(0)")
e("s_barrier")
e("s_cmp_lg_u32 s70, 0")
e("s_cbranch_scc1 L_ofin_done")
set_exec("0xffffff", "0")
e("v_mov_b32 v5, 0")
for w in range(8):
    e(f"ds_read_b64 v[{40+2*w}:{41+2*w}], v5 offset:{OG_OFF + 768 + 8*w}")
e("v_lshlrev_b32 v5, 2, v1")
for w in range(8):
    e(f"ds_read_b32 v{64+w}, v5 offset:{OG_OFF + 96*w}")
e("s_waitcnt lgkmcnt(0)")
e("v_max_f32 v6, v40, v42")
for w in range(2, 8):
    e(f"v_max_f32 v6, v6, v{40+2*w}")
for w in range(8):
    e(f"v_sub_f32 v{40+2*w}, v{40+2*w}, v6")
    e(f"v_mul_f32 v{40+2*w}, {LOG2E}, v{40+2*w}")
    e(f"v_exp_f32 v{40+2*w}, v{40+2*w}")
g.nop(1)
e("v_mul_f32 v7, v40, v41")
for w in range(1, 8):
    e(f"v_fma_f32 v7, v{40+2*w}, v{41+2*w}, v7")
e("v_mul_f32 v8, v40, v64")
for w in range(1, 8):
    e(f"v_fma_f32 v8, v{40+2*w}, v{64+w}, v8")
e("v_rcp_f32 v7, v7")
g.nop(1)
e("v_mul_f32 v8, v8, v7")
rnd(8, 8)
e(f"ds_write_b32 v5, v8 offset:{OFIN_OFF}")
full_exec()
e("s_waitcnt lgkmcnt(0)")
g.lab("L_ofin_done")
e("s_barrier")
stamp(8)
e("v_lshlrev_b32 v5, 4, v138")
e(f"ds_read_b128 v[6:9], v5 offset:{OFIN_OFF}")
e("v_lshlrev_b32 v5, 2, v138")
e(f"ds_read_b32 v10, v5 offset:{H_OFF}")
for k in range(40, 56):
    e(f"v_mov_b32 v{k}, 0")
e("s_waitcnt vmcnt(0) lgkmcnt(0)")
for i in range(4):
    e(f"v_lshrrev_b32 v14, 16, v{6+i}")
    for d in range(4):
        e(f"v_dot2_f32_bf16 v{40+2*d}, v{144+4*i+d}, v14, v{40+2*d}")
        e(f"v_dot2_f32_bf16 v{41+2*d}, v{144+4*i+d}, v{6+i}, v{41+2*d}")
e("v_lshrrev_b32 v14, 16, v10")
for d in range(4):
    e(f"v_dot2_f32_bf16 v{48+2*d}, v{140+d}, v14, v{48+2*d}")
    e(f"v_dot2_f32_bf16 v{49+2*d}, v{140+d}, v10, v{49+2*d}")
e("v_mul_u32_u24 v5, 2560, v138")
e("v_lshlrev_b32 v6, 5, v139")
e("v_add_u32 v5, v5, v6")
e("v_cmp_gt_u32 vcc, 480, v0")
e("s_and_saveexec_b64 s[78:79], vcc")
g.nop(2)
e(f"ds_write_b128 v5, v[40:43] offset:{S2_OFF}")
e(f"ds_write_b128 v5, v[44:47] offset:{S2_OFF+16}")
e(f"ds_write_b128 v5, v[48:51] offset:{S2_OFF+15360}")
e(f"ds_write_b128 v5, v[52:55] offset:{S2_OFF+15360+16}")
full_exec()
e("s_waitcnt lgkmcnt(0)")
e("s_barrier")
e("v_cmp_le_u32 vcc, 214, v0")
e("v_subrev_u32 v6, 214, v0")
g.nop(1)
e("v_cndmask_b32 v6, v0, v6, vcc")
e("v_cndmask_b32 v7, 0, 1, vcc")
e("v_mul_u32_u24 v5, 15360, v7")
e("v_mul_u32_u24 v8, 12, v6")
e("v_add_u32 v5, v5, v8")
e("v_cmp_gt_u32 vcc, 428, v0")
e("s_and_saveexec_b64 s[78:79], vcc")
e("s_cbranch_execz L_s2_done")
for rg in range(6):
    for k in range(3):
        e(f"ds_read_b32 v{40+4*rg+k}, v5 offset:{S2_OFF + 2560*rg + 4*k}")
e("s_waitcnt lgkmcnt(0)")
for rg in range(1, 6):
    for k in range(3):
        e(f"v_add_f32 v{40+k}, v{40+k}, v{40+4*rg+k}")
e("v_mov_b32 v43, s86")
e("v_mul_u32_u24 v9, 3424, v7")
e("v_lshlrev_b32 v8, 4, v6")
e("v_add_u32 v9, v9, v8")
e("s_lshl_b32 s72, s2, 13")
e(f"s_add_u32 s72, s72, {WS_S}")
e("v_add_u32 v9, s72, v9")
e("global_store_dwordx4 v9, v[40:43], s[28:29] sc1")
g.lab("L_s2_done")
full_exec()
e("s_cmp_ge_u32 s2, 214")
e("s_cbranch_scc1 L_fin")
e("v_lshrrev_b32 v7, 8, v0")
e("v_and_b32 v6, 255, v0")
e("v_lshlrev_b32 v6, 13, v6")
e("v_mul_u32_u24 v9, 3424, v7")
e("v_add_u32 v9, v9, v6")
e("s_lshl_b32 s72, s2, 4")
e(f"s_add_u32 s72, s72, {WS_S}")
e("v_add_u32 v9, s72, v9")
e("s_mul_i32 s72, s2, 3")
e("v_add_u32 v5, s72, v1")
e("v_lshlrev_b32 v5, 1, v5")
e("buffer_load_ushort v44, v5, s[56:59], 0 offen")
e("buffer_load_ushort v45, v5, s[64:67], 0 offen")
SLP = 1
for o in OPTS:
    if o.startswith("slp"):
        SLP = int(o[3:])
e("s_mov_b32 s74, 0")
g.lab("L_fpoll")
e("global_load_dwordx4 v[40:43], v9, s[28:29] sc1")
e("s_waitcnt vmcnt(0)")
e("v_cmp_ne_u32 vcc, v137, v43")
e("v_cmp_eq_u32 s[78:79], 0, v137")
e("s_add_u32 s74, s74, 1")
g.nop(4)
e("s_or_b64 vcc, vcc, s[78:79]")
g.nop(4)
e("s_cbranch_vccz L_fpoll_done")
e("s_cmp_ge_u32 s74, 0x40000")
e("s_cbranch_scc1 L_fpoll_done")
e("s_mov_b64 exec, vcc")
e(f"s_sleep {SLP}")
e("global_load_dword v137, v135, s[26:27] sc1")
e("s_branch L_fpoll")
g.lab("L_fpoll_done")
full_exec()
stamp(9)
dpp_reduce("v_add_f32", [40, 41, 42])
e("s_lshl_b32 s72, s70, 4")
e("v_mov_b32 v6, s72")
set_exec("0", "0x80000000")
e(f"ds_write_b128 v6, v[40:43] offset:{RED_OFF}")
full_exec()
e("s_waitcnt lgkmcnt(0)")
e("s_barrier")
e("s_cmp_lg_u32 s70, 0")
e("s_cbranch_scc1 L_fin")
set_exec("0x7", "0")
e("v_lshlrev_b32 v6, 2, v1")
for w in range(8):
    e(f"ds_read_b32 v{48+w}, v6 offset:{RED_OFF + 16*w}")
e("s_waitcnt lgkmcnt(0)")
e("v_add_f32 v48, v48, v49")
e("v_add_f32 v50, v50, v51")
e("v_add_f32 v48, v48, v50")
e("v_add_f32 v52, v52, v53")
e("v_add_f32 v54, v54, v55")
e("v_add_f32 v52, v52, v54")
rnd(48, 48)
rnd(52, 52)
e("v_lshlrev_b32 v45, 16, v45")
e("v_add_f32 v52, v52, v45")
rnd(52, 52)
e(f"v_mul_f32 v53, {f32(-1.4426950408889634)}, v52")
e("v_exp_f32 v53, v53")
g.nop(1)
e("v_add_f32 v53, 1.0, v53")
e("v_rcp_f32 v53, v53")
g.nop(1)
e("v_mul_f32 v52, v52, v53")
rnd(52, 52)
e("v_mul_f32 v48, v48, v52")
rnd(48, 48)
e("v_lshlrev_b32 v44, 16, v44")
e("v_add_f32 v48, v44, v48")
e("v_cvt_pk_bf16_f32 v48, v48, v48")
e("v_cmp_gt_u32 vcc, 1280, v5")
e("s_and_saveexec_b64 s[78:79], vcc")
e("s_cbranch_execz L_nostore")
e("global_store_short v5, v48, s[24:25]")
g.lab("L_nostore")
full_exec()
g.lab("L_fin")
if STAMPS:
    stamp(10)
    e("s_lshl_b32 s72, s2, 3")
    e("s_add_u32 s72, s72, s70")
    e("s_lshl_b32 s72, s72, 6")
    e(f"s_add_u32 s72, s72, {WS_STAMP}")
    e("v_mov_b32 v5, s72")
    set_exec("1", "0")
    for i in range(11):
        e(f"v_mov_b32 v6, s{88+i}")
        e(f"global_store_dword v5, v6, s[28:29] offset:{4*i}")
        e("s_waitcnt vmcnt(0)")
    full_exec()
    if "dbg" in OPTS:
        e("s_cmp_lg_u32 s70, 5")
        e("s_cbranch_scc1 L_end")
        e("s_cmp_eq_u32 s2, 0")
        e("s_cselect_b32 s72, 4, 28")
        e("s_cmp_eq_u32 s2, 0")
        e("s_cbranch_scc1 L_dbg")
        e("s_cmp_lg_u32 s2, 9")
        e("s_cbranch_scc1 L_end")
        g.lab("L_dbg")
        e("v_mov_b32 v5, s72")
        set_exec("1", "0")
        for k, i in enumerate((3, 7, 10)):
            e(f"s_sub_u32 s74, s{88+i}, s88")
            e("v_mov_b32 v6, s74")
            e(f"global_store_dword v5, v6, s[26:27] offset:{8*k}")
            e("s_waitcnt vmcnt(0)")
        full_exec()
g.lab("L_end")
e("s_endpgm")

hdr = open(f"cdna_kernels/{NAME}.s.ref").read().split("; Override launch")[0]
txt = hdr + f"""; Override launch geometry by editing the next line (default: block=256,
; grid=ceil(out_elems/256), lds=0). Harness parses it; keep it on one line.
; @launch grid=(256,1,1) block=(512,1,1) lds={LDS_BYTES}
.amdgcn_target "amdgcn-amd-amdhsa--gfx950"
.text
.globl {NAME}_kernel
.p2align 8
.type {NAME}_kernel,@function
{NAME}_kernel:
""" + "\n".join(g.L) + f"""
.section .rodata,"a"
.p2align 6
.amdhsa_kernel {NAME}_kernel
  .amdhsa_next_free_vgpr 256
  .amdhsa_next_free_sgpr 102
  .amdhsa_accum_offset 256
  .amdhsa_group_segment_fixed_size 0
  .amdhsa_kernarg_size 104
  .amdhsa_user_sgpr_count 2
  .amdhsa_user_sgpr_kernarg_segment_ptr 1
  .amdhsa_system_sgpr_workgroup_id_x 1
.end_amdhsa_kernel
"""
open(OUT, "w").write(txt)
print("wrote", OUT, len(g.L), "lines")
```
